```python
import torch

def _softmax(x, axis=-1):
    return torch.softmax(x, dim=axis)
def _gelu(x):
    return torch.nn.functional.gelu(x, approximate="tanh")
def _silu(x):
    return torch.nn.functional.silu(x)
def _sigmoid(x):
    return torch.sigmoid(x)
def _layernorm(x, axis=-1, eps=1e-5):
    m = x.mean(dim=axis, keepdim=True)
    v = x.var(dim=axis, keepdim=True, unbiased=False)
    return (x - m) / torch.sqrt(v + eps)
def _scatter_add(tgt, idx, src, axis=0):
    return tgt.clone().index_add_(axis, idx, src)
def _segment_sum(src, seg, n):
    out = torch.zeros((n,) + src.shape[1:], dtype=src.dtype)
    return out.index_add_(0, seg, src)
def _pad(x, pw):
    flat = tuple(v for pair in reversed(pw) for v in pair)
    return torch.nn.functional.pad(x, flat)

kernel_name = 'parallel_sum__linear_kernel_hedgehog__glu_gated_swiglu__prompt'

def setup_inputs():

    _w = (lambda a: (lambda t: t.to(torch.bfloat16) if t.is_floating_point() else t)(torch.as_tensor(a)))
    def _A_setup():
        B, S, D, H = 1, 2048, 512, 32
        Dh = D // H
        return {
            "x": _w((lambda *s: torch.randn(*s, dtype=torch.bfloat16) * 0.05)(B, S, D)),
            "wqkv": _w((lambda *s: torch.randn(*s, dtype=torch.bfloat16) * 0.2)(D, 3 * D)),
            "w_phi": _w((lambda *s: torch.randn(*s, dtype=torch.bfloat16) * 0.2)(H, Dh, Dh) * (Dh ** -0.5)),
            "wo": _w((lambda *s: torch.randn(*s, dtype=torch.bfloat16) * 0.05)(D, D)),
        }
    _A_in = _A_setup()

    def _B_setup():
        B, S, D, F = 1, 2048, 512, 1376
        return {
            "x": _w((lambda *s: torch.randn(*s, dtype=torch.bfloat16) * 0.05)(B, S, D)),
            "w1": _w((lambda *s: torch.randn(*s, dtype=torch.bfloat16) * 0.4)(D, F) * (2.0 / D) ** 0.5),
            "w3": _w((lambda *s: torch.randn(*s, dtype=torch.bfloat16) * 0.4)(D, F) * (2.0 / D) ** 0.5),
            "w2": _w((lambda *s: torch.randn(*s, dtype=torch.bfloat16) * 0.4)(F, D) * (2.0 / F) ** 0.5),
        }
    _B_in = _B_setup()

    return {
        "A_x": _A_in["x"],
        "A_wqkv": _A_in["wqkv"],
        "A_w_phi": _A_in["w_phi"],
        "A_wo": _A_in["wo"],
        "B_x": _B_in["x"],
        "B_w1": _B_in["w1"],
        "B_w3": _B_in["w3"],
        "B_w2": _B_in["w2"],
    }

def reference(A_x, A_wqkv, A_w_phi, A_wo, B_x, B_w1, B_w3, B_w2):
    def _A_ref(x, wqkv, w_phi, wo):
        B, S, D = x.shape
        H = 32; Dh = D // H
        qkv = (lambda x, *d: x.permute(*d))((x @ wqkv).reshape(B, S, 3, H, Dh), 2, 0, 3, 1, 4)
        q, k, v = qkv[0], qkv[1], qkv[2]
        pq = torch.einsum("bhsd,hdf->bhsf", q, w_phi)
        pk = torch.einsum("bhsd,hdf->bhsf", k, w_phi)
        phi_q = torch.concatenate([_softmax(pq, axis=-1), _softmax(-pq, axis=-1)], axis=-1)
        phi_k = torch.concatenate([_softmax(pk, axis=-1), _softmax(-pk, axis=-1)], axis=-1)
        kv = torch.einsum("bhsf,bhsd->bhfd", phi_k, v)
        z  = torch.einsum("bhsf->bhf", phi_k)
        num = torch.einsum("bhqf,bhfd->bhqd", phi_q, kv)
        den = torch.einsum("bhqf,bhf->bhq", phi_q, z)[..., None] + 1e-6
        o = num / den
        return (lambda x, *d: x.permute(*d))(o, 0, 2, 1, 3).reshape(B, S, D) @ wo

    def _B_ref(x, w1, w3, w2):
        gate = torch.einsum("bsd,df->bsf", x, w1)
        up = torch.einsum("bsd,df->bsf", x, w3)
        h = _silu(gate) * up
        out = torch.einsum("bsf,fd->bsd", h, w2)
        return out

    x = A_x
    xn = _layernorm(x, axis=-1)
    return x + _A_ref(xn, A_wqkv, A_w_phi, A_wo) + _B_ref(xn, B_w1, B_w3, B_w2)
```

```python
import re

_VR = re.compile(r"^(-|\|)?v\[(\d+):(\d+)\]\|?$|^(-|\|)?v(\d+)\|?$")
_SR = re.compile(r"^-?s\[(\d+):(\d+)\]$|^-?s(\d+)$")
TRANS = ("v_exp_f32", "v_log_f32", "v_rcp_f32", "v_rsq_f32", "v_sqrt_f32", "v_sin_f32", "v_cos_f32")


def vregs(op):
    op = op.strip()
    if op.startswith("abs("):
        op = op[4:-1]
    m = _VR.match(op)
    if not m:
        return set()
    if m.group(2) is not None:
        return set(range(int(m.group(2)), int(m.group(3)) + 1))
    return {int(m.group(5))}


def sregs(op):
    op = op.strip()
    if op == "vcc":
        return {"vcc"}
    if op in ("exec", "exec_lo", "exec_hi"):
        return {"exec"}
    if op == "m0":
        return {"m0"}
    m = _SR.match(op)
    if not m:
        return set()
    if m.group(1) is not None:
        return set(range(int(m.group(1)), int(m.group(2)) + 1))
    return {int(m.group(3))}


class Ins:
    def __init__(self, text):
        self.text = text
        t = text.split(";")[0].strip()
        parts = t.split(None, 1)
        self.mn = mn = parts[0]
        rest = parts[1] if len(parts) > 1 else ""
        ops = [o.strip() for o in rest.split(",")] if rest else []
        mods = []
        if ops:
            sp = ops[-1].split()
            ops[-1] = sp[0] if sp else ""
            mods = sp[1:]
        self.ops, self.mods = ops, mods
        self.vd = set(); self.vs = set(); self.sd = set(); self.ss = set()
        self.mA = set(); self.mB = set(); self.mC = set()
        self.cls = "other"
        self.ws = 1
        self.pad = 0
        self.target = None
        self.wide_store = False
        base = mn.replace("_e32", "").replace("_e64", "")
        self.base = base
        if mn.startswith("v_mfma"):
            self.cls = "mfma"
            self.passes = 8 if "32x32x16" in mn else 4
            self.vd = vregs(ops[0]); self.mA = vregs(ops[1]); self.mB = vregs(ops[2]); self.mC = vregs(ops[3])
            self.vs = self.mA | self.mB | self.mC
        elif mn.startswith("v_"):
            self.cls = "valu"
            if base.startswith("v_cmp"):
                self.sd = sregs(ops[0])
                srcs = ops[1:]
            elif base.startswith(("v_readfirstlane", "v_readlane")):
                self.sd = sregs(ops[0]); srcs = ops[1:]
            elif base.startswith("v_permlane") and "swap" in base:
                self.vd = vregs(ops[0]) | vregs(ops[1]); srcs = ops
            else:
                self.vd = vregs(ops[0]); srcs = ops[1:]
                if base.startswith(("v_fmac", "v_dot2c")):
                    srcs = ops
                if base.startswith("v_cndmask") and len(ops) == 3:
                    self.ss.add("vcc")
            for o in srcs:
                self.vs |= vregs(o); self.ss |= sregs(o)
        elif mn.startswith(("buffer_", "global_")):
            self.cls = "vmem"
            lds = "lds" in mods or "_lds_" in mn
            self.lds = lds
            if "load" in mn and not lds:
                self.vd = vregs(ops[0]); srcs = ops[1:]
            else:
                srcs = ops
            if "store" in mn and ("x4" in mn or "x3" in mn):
                self.wide_store = True
                self.store_data = vregs(ops[0] if mn.startswith("buffer") else ops[1])
            for o in srcs:
                self.vs |= vregs(o); self.ss |= sregs(o)
            if lds:
                self.ss.add("m0")
        elif mn.startswith("ds_"):
            self.cls = "ds"
            if "read" in mn:
                self.vd = vregs(ops[0]); srcs = ops[1:]
            else:
                srcs = ops
            for o in srcs:
                self.vs |= vregs(o)
        elif mn.startswith("s_"):
            self.cls = "salu"
            if mn == "s_nop":
                self.ws = int(ops[0], 0) + 1
            elif mn.startswith(("s_branch", "s_cbranch")):
                self.target = ops[0]
            elif mn.startswith(("s_cmp", "s_bitcmp", "s_waitcnt", "s_barrier", "s_sleep", "s_setprio", "s_endpgm")):
                for o in ops:
                    self.ss |= sregs(o)
            else:
                self.sd = sregs(ops[0])
                for o in ops[1:]:
                    self.ss |= sregs(o)
                if "saveexec" in mn:
                    self.sd.add("exec")
        self.is_trans = base in TRANS
        self.is_dot = base.startswith("v_dot")
        self.is_perm = base.startswith("v_permlane")
        self.is_rl = base.startswith(("v_readfirstlane", "v_readlane"))
        self.is_dpp = any(m.startswith(("row_", "quad_perm", "wave_")) for m in mods)


def need(p, c):
    n = 0
    if p.cls == "valu":
        if c.cls == "mfma" and (p.vd & c.vs):
            n = max(n, 2)
        if c.cls == "valu":
            if p.is_trans and not c.is_trans and (p.vd & (c.vs | c.vd)):
                n = max(n, 1)
            if c.is_perm and (p.vd & c.vs):
                n = max(n, 2)
            if c.is_rl and (p.vd & c.vs):
                n = max(n, 1)
            if c.is_dpp and (p.vd & c.vs):
                n = max(n, 2)
            if p.sd & c.ss:
                n = max(n, 4 if c.is_rl else 2)
        if p.is_dot:
            if c.cls in ("valu", "mfma", "vmem", "ds") and (p.vd & (c.vs | c.vd)):
                same_acc = c.is_dot and c.base == p.base and (p.vd == c.vd) and not (p.vd & set().union(*[vregs(o) for o in c.ops[1:3]]))
                if not same_acc:
                    n = max(n, 3)
        if c.cls == "vmem" and (p.sd & c.ss):
            n = max(n, 5)
        if c.cls == "salu" and (p.sd & c.ss):
            n = max(n, 1)
        if "exec" in p.sd and c.cls == "mfma":
            n = max(n, 4)
    if p.cls == "mfma":
        big = p.passes == 8
        if c.cls == "mfma":
            if p.vd & (c.mA | c.mB):
                n = max(n, 12 if big else 8)
            if p.vd & c.mC:
                if not (p.vd == c.mC and p.passes == c.passes):
                    n = max(n, 10 if big else 6)
            elif p.vd & c.vd:
                n = max(n, 12 if big else 8)
        elif c.cls in ("valu", "vmem", "ds"):
            if p.vd & (c.vs | c.vd):
                n = max(n, 12 if big else 8)
            if c.cls == "valu" and (p.mC & c.vd):
                n = max(n, 7 if big else 3)
    if p.cls == "salu" and "m0" in p.sd and c.cls == "vmem" and "m0" in c.ss:
        n = max(n, 1)
    if p.cls == "vmem" and p.wide_store:
        if c.cls in ("valu", "mfma") and (p.store_data & c.vd):
            n = max(n, 2)
        elif c.vd & p.store_data:
            n = max(n, 1)
    return n


class Asm:
    def __init__(self):
        self.items = []

    def I(self, text):
        for line in text.strip().split("\n"):
            line = line.strip()
            if line and not line.startswith(";"):
                self.items.append(Ins(line))

    def L(self, name):
        self.items.append(("label", name))

    def raw(self, text):
        self.items.append(("raw", text))

    def fix_hazards(self, verbose=False):
        items = self.items
        labels = {it[1]: i for i, it in enumerate(items) if isinstance(it, tuple) and it[0] == "label"}
        preds = [[] for _ in items]
        for i, it in enumerate(items):
            if isinstance(it, Ins):
                if it.target is not None:
                    preds[labels[it.target]].append(i)
                if it.mn in ("s_branch", "s_endpgm"):
                    continue
            if i + 1 < len(items):
                preds[i + 1].append(i)
        inserted = 0
        changed = True
        while changed:
            changed = False
            for i, c in enumerate(items):
                if not isinstance(c, Ins) or c.cls == "other":
                    continue
                if c.cls == "salu" and not c.ss:
                    continue
                worst = 0
                why = None
                stack = [(p, c.pad) for p in preds[i]]
                seen = {}
                while stack:
                    j, d = stack.pop()
                    if seen.get(j, 99) <= d:
                        continue
                    seen[j] = d
                    p = items[j]
                    if isinstance(p, Ins):
                        nn = need(p, c)
                        if nn - d > worst:
                            worst = nn - d; why = p
                        d2 = d + p.ws + p.pad
                    else:
                        d2 = d
                    if d2 < 12:
                        for q in preds[j]:
                            stack.append((q, d2))
                if worst:
                    if verbose:
                        print(f"hazard: nop {worst} before: {c.text}   <- {why.text}")
                    c.pad += worst
                    inserted += 1
                    changed = True
        return inserted

    def text(self):
        out = []
        for it in self.items:
            if isinstance(it, Ins):
                if it.pad:
                    out.append(f"    s_nop {it.pad-1}")
                out.append("    " + it.text)
            elif it[0] == "label":
                out.append(it[1] + ":")
            else:
                out.append(it[1])
        return "\n".join(out) + "\n"


class Regs:
    def __init__(self, start, limit, prefix):
        self.n = start; self.limit = limit; self.p = prefix; self.hi = start

    def alloc(self, count=1, align=1):
        self.n = (self.n + align - 1) // align * align
        r = self.n
        self.n += count
        assert self.n <= self.limit, f"out of {self.p} regs"
        self.hi = max(self.hi, self.n)
        return r

    def mark(self):
        return self.n

    def release(self, m):
        self.n = m


def V(r, n=1):
    return f"v{r}" if n == 1 else f"v[{r}:{r+n-1}]"


def S(r, n=1):
    return f"s{r}" if n == 1 else f"s[{r}:{r+n-1}]"
```

```python
import sys, os
sys.path.insert(0, os.path.dirname(os.path.abspath(__file__)))
from asm import Asm, Regs, V, S

NAME = "parallel_sum__linear_kernel_hedgehog__glu_gated_swiglu__prompt"
K1 = "hh_k1_kernel"
K2 = "hh_k2_kernel"

HB = 0
QB = 0x600000
KVB = 0x800000
OB = 0x900000
FLB = 0xB00000
LOG2E = 0x3fb8aa3b
RS1 = 2752
RSQ = 3072
MFMA = "v_mfma_f32_32x32x16_bf16"
OPT = dict(prefetch_code=True)


def interleave(a, main, fill):
    n = len(main)
    k = 0
    for i, m in enumerate(main):
        a.I(m)
        upto = (len(fill) * (i + 1) + n - 1) // n if i < n - 1 else len(fill)
        while k < upto:
            f = fill[k]
            if callable(f):
                f()
            else:
                a.I(f)
            k += 1


def srd(a, d, lo, hi, size, add=None):
    if add is None:
        a.I(f"s_mov_b32 s{d}, s{lo}")
        a.I(f"s_and_b32 s{d+1}, s{hi}, 0xffff")
    else:
        a.I(f"s_add_u32 s{d}, s{lo}, {add}")
        a.I(f"s_addc_u32 s{d+1}, s{hi}, 0")
        a.I(f"s_and_b32 s{d+1}, s{d+1}, 0xffff")
    a.I(f"s_mov_b32 s{d+2}, {size}")
    a.I(f"s_mov_b32 s{d+3}, 0x20000")


def code_prefetch(a, vtmp, vjunk, nbytes, nthreads, vtid):
    if not OPT["prefetch_code"]:
        return 0
    a.I("s_getpc_b64 s[96:97]")
    a.I(f"v_lshlrev_b32 v{vtmp}, 4, v{vtid}")
    n = (nbytes + nthreads * 16 - 1) // (nthreads * 16)
    for i in range(n):
        a.I(f"global_load_dwordx4 {V(vjunk,4)}, v{vtmp}, s[96:97]")
        if i < n - 1:
            a.I(f"v_add_u32 v{vtmp}, {nthreads*16}, v{vtmp}")
    return n


def softmax_pm(a, D, T, sL):
    t0, t1, t2, t3 = T, T + 1, T + 2, T + 3
    a.I(f"v_max3_f32 v{t0}, v{D}, v{D+1}, v{D+2}")
    a.I(f"v_max3_f32 v{t1}, v{D+8}, v{D+9}, v{D+10}")
    a.I(f"v_max3_f32 v{t2}, v{D+3}, v{D+4}, v{D+5}")
    a.I(f"v_max3_f32 v{t3}, v{D+11}, v{D+12}, v{D+13}")
    a.I(f"v_max3_f32 v{t0}, v{D+6}, v{D+7}, v{t0}")
    a.I(f"v_max3_f32 v{t1}, v{D+14}, v{D+15}, v{t1}")
    a.I(f"v_max_f32 v{t0}, v{t0}, v{t2}")
    a.I(f"v_max_f32 v{t1}, v{t1}, v{t3}")
    a.I(f"v_permlane32_swap_b32 v{t0}, v{t1}")
    a.I(f"v_max_f32 v{t0}, v{t0}, v{t1}")
    a.I(f"v_mul_f32 v{t0}, s{sL}, v{t0}")
    a.I(f"v_mov_b32 v{t1}, v{t0}")
    a.I(f"v_permlane32_swap_b32 v{t0}, v{t1}")
    for i in range(16):
        a.I(f"v_fma_f32 v{D+i}, v{D+i}, s{sL}, -v{t0 if i < 8 else t1}")
    for i in range(16):
        a.I(f"v_exp_f32 v{D+i}, v{D+i}")
    a.I(f"v_add_f32 v{t0}, v{D}, v{D+1}")
    a.I(f"v_add_f32 v{t1}, v{D+8}, v{D+9}")
    a.I(f"v_add_f32 v{t2}, v{D+2}, v{D+3}")
    a.I(f"v_add_f32 v{t3}, v{D+10}, v{D+11}")
    for i in (4, 6):
        a.I(f"v_add_f32 v{t0}, v{t0}, v{D+i}")
        a.I(f"v_add_f32 v{t1}, v{t1}, v{D+8+i}")
        a.I(f"v_add_f32 v{t2}, v{t2}, v{D+i+1}")
        a.I(f"v_add_f32 v{t3}, v{t3}, v{D+8+i+1}")
    a.I(f"v_add_f32 v{t0}, v{t0}, v{t2}")
    a.I(f"v_add_f32 v{t1}, v{t1}, v{t3}")
    a.I(f"v_permlane32_swap_b32 v{t0}, v{t1}")
    a.I(f"v_add_f32 v{t0}, v{t0}, v{t1}")
    a.I(f"v_rcp_f32 v{t0}, v{t0}")
    a.I(f"v_mov_b32 v{t1}, v{t0}")
    a.I(f"v_permlane32_swap_b32 v{t0}, v{t1}")
    for i in range(16):
        a.I(f"v_mul_f32 v{D+i}, v{D+i}, v{t0 if i < 8 else t1}")


def pack8(a, dst, src):
    for i in range(4):
        a.I(f"v_cvt_pk_bf16_f32 v{dst+i}, v{src+2*i}, v{src+2*i+1}")


sX_, sWQKV, sWPHI, sW1, sW3, sWS = 4, 6, 8, 12, 14, 16
dX, dWA, dWB, dWE, dO0, dO1 = 20, 24, 28, 32, 36, 44
sWV, sXCD, sJ, sROWQ, sCOLH = 48, 49, 50, 51, 52
sRB, sG, sRH, sCQ, sROT = 53, 54, 55, 56, 57
sXO, sWO, sDST, sT, sC, sRSL, sDSL, sDL, sONES = 58, 59, 60, 61, 62, 63, 64, 65, 66
sEOFF, sELDS, sT2, sT3, sL2E, sRT0, sRT1 = 67, 68, 69, 70, 71, 72, 73
sMASK = 74
sSLOT, sM2 = 76, 77


def k1_type(a, kind):
    ffn = kind == "ffn"
    P = f"k1_{kind}"
    XI = 4 if kind == "kv" else 2
    SLOT = 53376 if ffn else 49152
    WOFF = 32768 if kind == "kv" else 16384
    UOFF = 18432 + 128
    RSW = RS1 if ffn else RSQ
    r = Regs(2, 256, "v")
    vL = 0
    vTID = 1
    acc = [r.alloc(16, 4) for _ in range(5 if ffn else 4)]
    fx = [[r.alloc(4, 4) for _ in range(2)] for _ in range(2)]
    fw = [[r.alloc(4, 4) for _ in range(3 if ffn else 2)] for _ in range(2)]
    aX = [[r.alloc() for _ in range(4)] for _ in range(2)]
    aW = [r.alloc() for _ in range(4)]
    aE = [r.alloc() for _ in range(4)] if ffn else []
    st = [r.alloc() for _ in range(4)]
    cs = [r.alloc() for _ in range(3)]
    vDX = r.alloc(); vDW = r.alloc(); vDE = r.alloc()
    junk = r.alloc(4, 4)
    t = [r.alloc() for _ in range(8)]

    a.L(P)
    npf = code_prefetch(a, t[0], junk, 8192, 512, vTID)
    if ffn:
        a.I(f"s_and_b32 s{sT}, s{sJ}, 3")
        a.I(f"s_lshl_b32 s{sRB}, s{sROWQ}, 2")
        a.I(f"s_add_u32 s{sRB}, s{sRB}, s{sT}")
        a.I(f"s_lshr_b32 s{sT}, s{sJ}, 2")
        a.I(f"s_mul_i32 s{sG}, s{sCOLH}, 5")
        a.I(f"s_add_u32 s{sG}, s{sG}, s{sT}")
        a.I(f"s_lshl_b32 s{sT2}, s{sRB}, 17")
        a.I(f"s_mul_i32 s{sWO}, s{sG}, 288")
    elif kind == "kv":
        a.I(f"s_sub_u32 s{sT}, s{sJ}, 20")
        a.I(f"s_and_b32 s{sT2}, s{sT}, 1")
        a.I(f"s_lshl_b32 s{sRB}, s{sROWQ}, 1")
        a.I(f"s_add_u32 s{sRB}, s{sRB}, s{sT2}")
        a.I(f"s_lshr_b32 s{sT}, s{sT}, 1")
        a.I(f"s_lshl_b32 s{sG}, s{sCOLH}, 2")
        a.I(f"s_add_u32 s{sG}, s{sG}, s{sT}")
        a.I(f"s_lshl_b32 s{sT2}, s{sRB}, 18")
        a.I(f"s_lshl_b32 s{sWO}, s{sG}, 7")
        a.I(f"s_add_u32 s{sWO}, s{sWO}, 1024")
    else:
        a.I(f"s_sub_u32 s{sT}, s{sJ}, 28")
        a.I(f"s_lshl_b32 s{sRB}, s{sROWQ}, 2")
        a.I(f"s_add_u32 s{sRB}, s{sRB}, s{sT}")
        a.I(f"s_mov_b32 s{sG}, s{sCOLH}")
        a.I(f"s_lshl_b32 s{sT2}, s{sRB}, 17")
        a.I(f"s_lshl_b32 s{sWO}, s{sCOLH}, 9")
    a.I(f"s_and_b32 s{sRH}, s{sWV}, 1")
    a.I(f"s_lshr_b32 s{sCQ}, s{sWV}, 1")
    a.I(f"s_lshl_b32 s{sROT}, s{sRH}, 1")
    a.I(f"s_add_u32 s{sROT}, s{sROT}, s{sCQ}")
    a.I(f"s_and_b32 s{sROT}, s{sROT}, 3")
    a.I(f"v_lshrrev_b32 v{t[0]}, 3, v{vL}")
    a.I(f"v_and_b32 v{t[1]}, 7, v{vL}")
    a.I(f"s_lshl_b32 s{sT}, s{sWV}, 3")
    a.I(f"v_add_u32 v{t[2]}, s{sT}, v{t[0]}")
    a.I(f"v_bfe_u32 v{t[3]}, v{t[2]}, 1, 3")
    a.I(f"v_xor_b32 v{t[3]}, v{t[3]}, v{t[1]}")
    a.I(f"v_lshlrev_b32 v{t[3]}, 4, v{t[3]}")
    a.I(f"v_lshl_add_u32 v{vDX}, v{t[2]}, 10, v{t[3]}")
    if ffn:
        a.I(f"s_mov_b32 s{sT3}, {RS1}")
        a.I(f"s_mov_b32 s{sT}, 3641")
        for (dst, pat) in ((vDW, None), (vDE, 8)):
            if pat is None:
                a.I(f"v_mov_b32 v{t[4]}, v{vTID}")
            else:
                a.I(f"v_add_u32 v{t[4]}, 512, v{vL}")
            a.I(f"v_mul_u32_u24 v{t[5]}, s{sT}, v{t[4]}")
            a.I(f"v_lshrrev_b32 v{t[5]}, 16, v{t[5]}")
            a.I(f"v_mul_u32_u24 v{t[6]}, 18, v{t[5]}")
            a.I(f"v_sub_u32 v{t[6]}, v{t[4]}, v{t[6]}")
            a.I(f"v_lshlrev_b32 v{t[6]}, 4, v{t[6]}")
            a.I(f"v_mad_u32_u24 v{dst}, v{t[5]}, s{sT3}, v{t[6]}")
    else:
        a.I(f"v_and_b32 v{t[3]}, 2, v{t[0]}")
        a.I(f"v_lshlrev_b32 v{t[3]}, 1, v{t[3]}")
        a.I(f"v_xor_b32 v{t[3]}, v{t[3]}, v{t[1]}")
        a.I(f"v_lshlrev_b32 v{t[3]}, 4, v{t[3]}")
        a.I(f"s_mov_b32 s{sT3}, {RSQ}")
        a.I(f"v_mad_u32_u24 v{vDW}, v{t[2]}, s{sT3}, v{t[3]}")
    a.I("s_waitcnt lgkmcnt(0)")
    srd(a, dX, sX_, sX_ + 1, (256 if kind == "kv" else 128) * 1024, add=f"s{sT2}")
    if ffn:
        srd(a, dWA, sW1, sW1 + 1, 512 * RS1)
        srd(a, dWB, sW3, sW3 + 1, 512 * RS1)
        a.I(f"s_bitcmp1_b32 s{sWV}, 1")
        a.I(f"s_cselect_b32 s{dWE}, s{dWB}, s{dWA}")
        a.I(f"s_cselect_b32 s{dWE+1}, s{dWB+1}, s{dWA+1}")
        a.I(f"s_cselect_b32 s{sELDS}, {UOFF}, 0")
        a.I(f"s_add_u32 s{sELDS}, s{sELDS}, {WOFF + 8192}")
        a.I(f"s_mov_b32 s{dWE+2}, {512*RS1}")
        a.I(f"s_mov_b32 s{dWE+3}, 0x20000")
        a.I(f"s_mul_i32 s{sEOFF}, s{sRH}, {32*RS1}")
        a.I(f"s_mul_i32 s{sT}, s{sRH}, 9216")
        a.I(f"s_add_u32 s{sELDS}, s{sELDS}, s{sT}")
        a.I(f"s_lshl_b32 s{sT}, s{sWV}, 10")
        a.I(f"s_sub_u32 s{sELDS}, s{sELDS}, s{sT}")
    else:
        srd(a, dWA, sWQKV, sWQKV + 1, 512 * RSQ)
    a.I(f"s_mov_b32 s{sXO}, 0")
    a.I(f"s_lshl_b32 s{sDST}, s{sWV}, 10")

    def dma_list(cls):
        L = []
        for i in range(XI):
            L.append((f"{8192*i}", ("x", 65536 * i), f"buffer_load_dwordx4 v{vDX}, {S(dX,4)}, %s offen lds"))
        if ffn:
            for (d, off) in ((dWA, 0), (dWB, UOFF)):
                for hi in range(2):
                    L.append((f"{WOFF + off + 9216*hi}", ("w", 32 * RS1 * hi), f"buffer_load_dwordx4 v{vDW}, {S(d,4)}, %s offen lds"))
            if cls == 1:
                L.append((f"s{sELDS}", ("w", f"s{sEOFF}"), f"buffer_load_dwordx4 v{vDE}, {S(dWE,4)}, %s offen lds"))
        else:
            for rg in range(4 if kind == "q" else 2):
                g = 128 * rg if kind == "q" else 1024 * rg
                L.append((f"{WOFF + 8192*rg - g}", ("w", 0), f"buffer_load_dwordx4 v{vDW}, {S(dWA,4)}, %s offen offset:{g} lds"))
        return L

    def emit_dma(e):
        m0e, (base, add), ins = e
        sb = sXO if base == "x" else sWO
        a.I(f"s_add_u32 m0, s{sDST}, {m0e}")
        if add == 0:
            a.I(ins % f"s{sb}")
        else:
            a.I(f"s_add_u32 s{sT}, s{sb}, {add}")
            a.I(ins % f"s{sT}")

    def dma_advance():
        a.I(f"s_add_u32 s{sXO}, s{sXO}, 128")
        a.I(f"s_add_u32 s{sWO}, s{sWO}, {64*RSW}")

    if kind == "kv":
        srd(a, dWE, sWPHI, sWPHI + 1, 32 * 512)
        a.I(f"s_lshl_b32 s{sT}, s{sG}, 11")
        a.I(f"s_lshl_b32 s{sT2}, s{sRH}, 10")
        a.I(f"s_add_u32 s{sT}, s{sT}, s{sT2}")
        a.I(f"v_lshlrev_b32 v{vDE}, 4, v{vL}")
        a.I(f"s_add_u32 m0, s{sDST}, {3*SLOT}")
        a.I(f"buffer_load_dwordx4 v{vDE}, {S(dWE,4)}, s{sT} offen lds")
    classes = (0, 1) if ffn else (0,)
    if ffn:
        a.I(f"s_cmp_ge_u32 s{sWV}, 4")
        a.I(f"s_cbranch_scc1 {P}_c1")
    for cls in classes:
        C = f"{P}_c{cls}"
        a.L(C)
        dl = dma_list(cls)
        NW = len(dl)
        extra = ffn and cls == 0
        for ch in range(3):
            for e in dl:
                emit_dma(e)
            dma_advance()
            a.I(f"s_add_u32 s{sDST}, s{sDST}, {SLOT if ch < 2 else -2*SLOT & 0xffffffff}")
        a.I(f"v_and_b32 v{t[0]}, 31, v{vL}")
        a.I(f"v_lshrrev_b32 v{t[1]}, 5, v{vL}")
        a.I(f"v_bfe_u32 v{t[2]}, v{vL}, 1, 3")
        if kind == "kv":
            a.I(f"s_lshl_b32 s{sRT0}, s{sCQ}, 1")
            a.I(f"s_add_u32 s{sRT1}, s{sRT0}, 1")
        else:
            a.I(f"s_and_b32 s{sT}, s{sCQ}, 1")
            a.I(f"s_lshl_b32 s{sRT0}, s{sRH}, 1")
            a.I(f"s_add_u32 s{sRT0}, s{sRT0}, s{sT}")
            a.I(f"s_xor_b32 s{sRT1}, s{sRT0}, 1")
        a.I(f"v_bfe_u32 v{t[4]}, v{vL}, 2, 2")
        a.I(f"v_lshl_add_u32 v{t[4]}, v{t[1]}, 3, v{t[4]}")
        a.I(f"v_and_b32 v{t[5]}, 3, v{vL}")
        a.I(f"v_lshlrev_b32 v{t[5]}, 3, v{t[5]}")
        a.I(f"v_bfe_u32 v{t[6]}, v{vL}, 4, 1")
        if ffn:
            a.I(f"s_mov_b32 s{sT3}, {UOFF}")
            a.I(f"v_mad_u32_u24 v{t[5]}, v{t[6]}, s{sT3}, v{t[5]}")
            a.I(f"v_mul_u32_u24 v{t[4]}, 288, v{t[4]}")
            a.I(f"v_add_u32 v{t[5]}, v{t[5]}, v{t[4]}")
            PITCH = 288
        else:
            if kind == "kv":
                a.I(f"s_lshl_b32 s{sT}, s{sRH}, 1")
            else:
                a.I(f"s_and_b32 s{sT}, s{sCQ}, 1")
                a.I(f"s_lshl_b32 s{sT}, s{sT}, 1")
            a.I(f"v_add_u32 v{t[6]}, s{sT}, v{t[6]}")
            a.I(f"v_and_b32 v{t[7]}, 2, v{t[4]}")
            a.I(f"v_xor_b32 v{t[6]}, v{t[6]}, v{t[7]}")
            a.I(f"v_lshl_add_u32 v{t[5]}, v{t[6]}, 5, v{t[5]}")
            a.I(f"v_lshl_add_u32 v{t[5]}, v{t[4]}, 7, v{t[5]}")
            PITCH = 128
        if ffn:
            a.I(f"s_lshl_b32 s{sT3}, s{sCQ}, 6")
            a.I(f"s_add_u32 s{sT3}, s{sT3}, {WOFF}")
        elif kind == "q":
            a.I(f"s_lshr_b32 s{sT3}, s{sCQ}, 1")
            a.I(f"s_lshl_b32 s{sT3}, s{sT3}, 14")
            a.I(f"s_add_u32 s{sT3}, s{sT3}, {WOFF}")
        else:
            a.I(f"s_mov_b32 s{sT3}, {WOFF}")
        for j in range(4):
            a.I(f"s_add_u32 s{sT}, s{sROT}, {j}")
            a.I(f"s_and_b32 s{sT}, s{sT}, 3")
            a.I(f"s_lshl_b32 s{sT2}, s{sT}, 1")
            a.I(f"v_add_u32 v{t[3]}, s{sT2}, v{t[1]}")
            a.I(f"v_xor_b32 v{t[3]}, v{t[3]}, v{t[2]}")
            a.I(f"v_lshlrev_b32 v{t[3]}, 4, v{t[3]}")
            a.I(f"v_lshl_add_u32 v{t[3]}, v{t[0]}, 7, v{t[3]}")
            a.I(f"s_lshl_b32 s{sT2}, s{sRT0}, 12")
            a.I(f"v_add_u32 v{aX[0][j]}, s{sT2}, v{t[3]}")
            a.I(f"s_lshl_b32 s{sT2}, s{sRT1}, 12")
            a.I(f"v_add_u32 v{aX[1][j]}, s{sT2}, v{t[3]}")
            a.I(f"s_mul_i32 s{sT}, s{sT}, {16*PITCH}")
            a.I(f"s_add_u32 s{sT2}, s{sT}, s{sT3}")
            a.I(f"v_add_u32 v{aW[j]}, s{sT2}, v{t[5]}")
            if extra:
                a.I(f"s_add_u32 s{sT2}, s{sT}, {WOFF + 256}")
                a.I(f"v_add_u32 v{aE[j]}, s{sT2}, v{t[5]}")
        for base in acc[:5 if extra else 4]:
            for i in range(16):
                a.I(f"v_mov_b32 v{base+i}, 0")
        for base in fx[1] + fw[1][:3 if extra else 2]:
            for i in range(4):
                a.I(f"v_mov_b32 v{base+i}, 0")
        for x in st + cs:
            a.I(f"v_mov_b32 v{x}, 0")
        a.I(f"s_mov_b32 s{sONES}, 0x3f803f80")
        a.I(f"s_mov_b32 s{sSLOT}, {SLOT}")
        a.I(f"s_mov_b32 s{sM2}, {-2*SLOT & 0xffffffff}")
        a.I(f"s_mov_b32 s{sC}, 0")
        a.I(f"s_mov_b32 s{sRSL}, 0")
        a.I(f"s_mov_b32 s{sDSL}, 0")
        a.I("s_mov_b64 vcc, 0")
        T1 = 32 if ffn else 8192
        H2 = 4 * PITCH

        def reads(j, s):
            a.I(f"ds_read_b128 {V(fx[s][0],4)}, v{aX[0][j]}")
            a.I(f"ds_read_b64_tr_b16 {V(fw[s][0],2)}, v{aW[j]}")
            a.I(f"ds_read_b64_tr_b16 {V(fw[s][0]+2,2)}, v{aW[j]} offset:{H2}")
            a.I(f"ds_read_b64_tr_b16 {V(fw[s][1],2)}, v{aW[j]} offset:{T1}")
            a.I(f"ds_read_b64_tr_b16 {V(fw[s][1]+2,2)}, v{aW[j]} offset:{T1+H2}")
            a.I(f"ds_read_b128 {V(fx[s][1],4)}, v{aX[1][j]}")
            if extra:
                a.I(f"ds_read_b64_tr_b16 {V(fw[s][2],2)}, v{aE[j]}")
                a.I(f"ds_read_b64_tr_b16 {V(fw[s][2]+2,2)}, v{aE[j]} offset:{H2}")

        def mf(s):
            L = []
            for rt in range(2):
                for tl in range(2):
                    c_ = acc[2 * rt + tl]
                    L.append(f"{MFMA} {V(c_,16)}, {V(fw[s][tl],4)}, {V(fx[s][rt],4)}, {V(c_,16)}")
            if extra:
                L.append(f"{MFMA} {V(acc[4],16)}, {V(fw[s][2],4)}, {V(fx[s][0],4)}, {V(acc[4],16)}")
            return L

        def xstats(s):
            L = []
            for i in range(4):
                for rt in range(2):
                    L.append(f"v_dot2c_f32_bf16 v{st[2*rt]}, s{sONES}, v{fx[s][rt]+i}")
                    L.append(f"v_dot2c_f32_bf16 v{st[2*rt+1]}, v{fx[s][rt]+i}, v{fx[s][rt]+i}")
            return L

        def cstats(s, tiles):
            L = []
            for i in range(4):
                for tl in tiles:
                    L.append(f"v_dot2c_f32_bf16 v{cs[tl]}, s{sONES}, v{fw[s][tl]+i}")
            return L

        a.I(f"s_waitcnt vmcnt({2*NW})")
        a.I(f"s_branch {C}_in")
        a.raw(".p2align 6")
        a.L(f"{C}_loop")
        a.I(f"s_waitcnt vmcnt({NW}) lgkmcnt(0)")
        a.I(f"s_cmp_lg_u32 s{sC}, 7")
        a.I(f"s_cbranch_scc1 {C}_in")
        a.I("s_waitcnt vmcnt(0)")
        a.L(f"{C}_in")
        a.I("s_barrier")
        reads(0, 0)
        fill = []
        for n, e in enumerate(dl):
            def f(e=e, n=n):
                a.I(f"s_cbranch_vccz {C}_sk{n}")
                emit_dma(e)
                a.L(f"{C}_sk{n}")
            fill.append(f)
        interleave(a, mf(1), fill)
        a.I("s_waitcnt lgkmcnt(0)")
        reads(1, 1)
        if kind == "kv":
            f0 = xstats(0) + cstats(0, (0, 1)); f1 = xstats(1)
        else:
            f0 = xstats(0) + cstats(0, (0, 1, 2) if extra else (0, 1)); f1 = cstats(1, (0, 1))
        interleave(a, mf(0), f0)
        a.I("s_waitcnt lgkmcnt(0)")
        reads(2, 0)
        interleave(a, mf(1), f1)
        a.I("s_waitcnt lgkmcnt(0)")
        reads(3, 1)
        f2 = []
        f2.append(f"s_add_u32 s{sRSL}, s{sRSL}, 1")
        f2.append(f"s_cmp_eq_u32 s{sRSL}, 3")
        f2.append(f"s_cselect_b32 s{sDL}, s{sM2}, s{sSLOT}")
        f2.append(f"s_cselect_b32 s{sRSL}, 0, s{sRSL}")
        for x in aX[0] + aX[1] + aW + (aE if extra else []):
            f2.append(f"v_add_u32 v{x}, s{sDL}, v{x}")

        def adv():
            a.I(f"s_cbranch_vccz {C}_ska")
            dma_advance()
            a.I(f"s_add_u32 s{sDSL}, s{sDSL}, 1")
            a.I(f"s_cmp_eq_u32 s{sDSL}, 3")
            a.I(f"s_cselect_b32 s{sT}, s{sM2}, s{sSLOT}")
            a.I(f"s_cselect_b32 s{sDSL}, 0, s{sDSL}")
            a.I(f"s_add_u32 s{sDST}, s{sDST}, s{sT}")
            a.L(f"{C}_ska")
            a.I(f"s_add_u32 s{sC}, s{sC}, 1")
            a.I(f"s_cmp_lt_u32 s{sC}, 6")
            a.I("s_cselect_b64 vcc, -1, 0")
        f2.append(adv)
        interleave(a, mf(0), f2)
        a.I(f"s_cmp_lt_u32 s{sC}, 8")
        a.I(f"s_cbranch_scc1 {C}_loop")
        SC = 131072 if kind == "kv" else 2 * SLOT
        CS = SC + (8192 if kind == "kv" else 4096)
        a.I("s_waitcnt lgkmcnt(0)")
        f3 = []
        slot_x = sRH if kind == "kv" else sCQ
        slot_c = sCQ if kind == "kv" else sRH
        f3.append(f"v_and_b32 v{t[0]}, 31, v{vL}")
        f3.append(f"v_lshrrev_b32 v{t[1]}, 5, v{vL}")
        f3.append(f"v_lshlrev_b32 v{t[2]}, 5, v{t[0]}")
        f3.append(f"v_lshl_add_u32 v{t[3]}, v{t[1]}, 2, v{t[2]}")
        f3.append(f"s_lshl_b32 s{sT}, s{slot_x}, 3")
        f3.append(f"s_add_u32 s{sT}, s{sT}, {SC}")
        for rt, srt in ((0, sRT0), (1, sRT1)):
            f3.append(f"v_permlane32_swap_b32 v{st[2*rt]}, v{st[2*rt+1]}")
            f3.append(f"s_lshl_b32 s{sT2}, s{srt}, 10")
            f3.append(f"v_add_f32 v{st[2*rt]}, v{st[2*rt]}, v{st[2*rt+1]}")
            f3.append(f"v_add_u32 v{aX[rt][0]}, s{sT2}, v{t[2]}")
            f3.append(f"s_add_u32 s{sT2}, s{sT2}, s{sT}")
            f3.append(f"v_add_u32 v{aX[rt][1]}, s{sT2}, v{t[3]}")
            f3.append(f"ds_write_b32 v{aX[rt][1]}, v{st[2*rt]}")
        TD = 1 if ffn else 2
        if ffn:
            f3.append(f"s_lshl_b32 s{sT3}, s{sCQ}, 1")
        elif kind == "q":
            f3.append(f"s_lshr_b32 s{sT3}, s{sCQ}, 1")
            f3.append(f"s_lshl_b32 s{sT3}, s{sT3}, 2")
            f3.append(f"s_and_b32 s{sT2}, s{sCQ}, 1")
            f3.append(f"s_add_u32 s{sT3}, s{sT3}, s{sT2}")
        else:
            f3.append(f"s_mov_b32 s{sT3}, s{sRH}")
        f3.append(f"s_lshl_b32 s{sT2}, s{sT3}, 9")
        f3.append(f"s_add_u32 s{sT2}, s{sT2}, {CS}")
        f3.append(f"v_lshlrev_b32 v{t[4]}, 4, v{t[0]}")
        f3.append(f"v_add_u32 v{aW[0]}, s{sT2}, v{t[4]}")
        f3.append(f"v_permlane32_swap_b32 v{cs[0]}, v{cs[1]}")
        f3.append(f"v_mul_u32_u24 v{t[5]}, {512*TD}, v{t[1]}")
        f3.append(f"v_add_f32 v{cs[0]}, v{cs[0]}, v{cs[1]}")
        f3.append(f"s_lshl_b32 s{sT2}, s{slot_c}, 2")
        f3.append(f"v_add3_u32 v{aW[1]}, v{aW[0]}, v{t[5]}, s{sT2}")
        f3.append(f"ds_write_b32 v{aW[1]}, v{cs[0]}")
        if extra:
            f3.append(f"v_mov_b32 v{cs[1]}, v{cs[2]}")
            f3.append(f"v_add_u32 v{aE[0]}, {CS + 8*512}, v{t[4]}")
            f3.append(f"s_lshl_b32 s{sT2}, s{sROT}, 2")
            f3.append(f"v_permlane32_swap_b32 v{cs[2]}, v{cs[1]}")
            f3.append(f"v_add_u32 v{aE[1]}, s{sT2}, v{aE[0]}")
            f3.append(f"v_add_f32 v{cs[2]}, v{cs[2]}, v{cs[1]}")
            f3.append(f"ds_write_b32 v{aE[1]}, v{cs[2]}")
        interleave(a, mf(1), f3)
        a.I("s_waitcnt lgkmcnt(0)")
        a.I("s_barrier")
        R = [fx[0][0], fx[0][1], fx[1][0], fx[1][1]]
        Cc = [fw[0][0], fw[0][1]] + ([fw[0][2]] if extra else [])
        for rt in range(2):
            a.I(f"v_add_u32 v{aX[rt][0]}, {SC}, v{aX[rt][0]}")
        for rt in range(2):
            a.I(f"ds_read_b128 {V(R[2*rt],4)}, v{aX[rt][0]}")
            if kind != "kv":
                a.I(f"ds_read_b128 {V(R[2*rt+1],4)}, v{aX[rt][0]} offset:16")
        for tl in range(2):
            if kind == "kv":
                a.I(f"ds_read_b128 {V(Cc[tl],4)}, v{aW[0]} offset:{512*TD*tl}")
            else:
                a.I(f"ds_read_b64 {V(Cc[tl],2)}, v{aW[0]} offset:{512*TD*tl}")
        if extra:
            a.I(f"ds_read_b128 {V(Cc[2],4)}, v{aE[0]}")
        a.I(f"s_mov_b32 s{sMASK}, -1")
        a.I(f"s_mov_b32 s{sMASK+1}, 0")
        a.I(f"s_mov_b32 s{sL2E}, {LOG2E}")
        a.I("s_waitcnt lgkmcnt(0)")
        rstd = [st[0], st[1]]
        Mop = [fw[1][0], fw[1][1]]
        for rt in range(2):
            A_, B_ = R[2 * rt], R[2 * rt + 1]
            a.I(f"v_add_f32 v{A_}, v{A_}, v{A_+2}")
            a.I(f"v_add_f32 v{A_+1}, v{A_+1}, v{A_+3}")
            if kind != "kv":
                a.I(f"v_add_f32 v{B_}, v{B_}, v{B_+2}")
                a.I(f"v_add_f32 v{B_+1}, v{B_+1}, v{B_+3}")
                a.I(f"v_add_f32 v{A_}, v{A_}, v{B_}")
                a.I(f"v_add_f32 v{A_+1}, v{A_+1}, v{B_+1}")
            a.I(f"v_mul_f32 v{A_}, 0xbb000000, v{A_}")
            a.I(f"v_mul_f32 v{A_+1}, 0x3b000000, v{A_+1}")
            a.I(f"v_fma_f32 v{A_+1}, -v{A_}, v{A_}, v{A_+1}")
            a.I(f"v_max_f32 v{A_+1}, 0, v{A_+1}")
            a.I(f"v_add_f32 v{A_+1}, 0x3727c5ac, v{A_+1}")
            a.I(f"v_rsq_f32 v{rstd[rt]}, v{A_+1}")
            M = Mop[rt]
            a.I(f"v_cvt_pk_bf16_f32 v{M}, v{A_}, v{A_}")
            a.I(f"v_and_b32 v{A_+2}, 0xffff0000, v{M}")
            a.I(f"v_sub_f32 v{A_+2}, v{A_}, v{A_+2}")
            a.I(f"v_cvt_pk_bf16_f32 v{M+1}, v{A_+2}, 0")
            a.I(f"v_cndmask_b32 v{M}, 0, v{M}, {S(sMASK,2)}")
            a.I(f"v_cndmask_b32 v{M+1}, 0, v{M+1}, {S(sMASK,2)}")
            a.I(f"v_mov_b32 v{M+2}, 0")
            a.I(f"v_mov_b32 v{M+3}, 0")
        for n, c_ in enumerate(Cc):
            a.I(f"v_add_f32 v{c_}, v{c_}, v{c_+1}")
            if kind == "kv" or n == 2:
                a.I(f"v_add_f32 v{c_+2}, v{c_+2}, v{c_+3}")
                a.I(f"v_add_f32 v{c_}, v{c_}, v{c_+2}")
            a.I(f"v_cvt_pk_bf16_f32 v{c_+1}, v{c_}, v{c_}")
            a.I(f"v_and_b32 v{c_+1}, 0xffff0000, v{c_+1}")
            a.I(f"v_sub_f32 v{c_+1}, v{c_}, v{c_+1}")
            a.I(f"v_cvt_pk_bf16_f32 v{c_}, v{c_}, v{c_+1}")
            a.I(f"v_mov_b32 v{c_+1}, v{c_}")
            a.I(f"v_mov_b32 v{c_+2}, 0")
            a.I(f"v_mov_b32 v{c_+3}, 0")
        for rt in range(2):
            for tl in range(2):
                c_ = acc[2 * rt + tl]
                a.I(f"{MFMA} {V(c_,16)}, {V(Cc[tl],4)}, {V(Mop[rt],4)}, {V(c_,16)}")
        if extra:
            a.I(f"{MFMA} {V(acc[4],16)}, {V(Cc[2],4)}, {V(Mop[0],4)}, {V(acc[4],16)}")
        vO = t[0]
        a.I(f"v_lshlrev_b32 v{vO}, 4, v{vL}")
        if ffn:
            for rt, srt, d in ((0, sRT0, dO0), (1, sRT1, dO1)):
                a.I(f"s_lshl_b32 s{sT}, s{sRB}, 2")
                a.I(f"s_add_u32 s{sT}, s{sT}, s{srt}")
                a.I(f"s_mul_i32 s{sT}, s{sT}, {86*1024}")
                srd(a, d, sWS, sWS + 1, 86 * 1024, add=f"s{sT}")
            a.I(f"s_mul_i32 s{sT3}, s{sG}, {9*1024}")
            a.I(f"s_lshl_b32 s{sT2}, s{sCQ}, 11")
            a.I(f"s_add_u32 s{sT2}, s{sT2}, s{sT3}")
            a.I(f"s_add_u32 s{sT3}, s{sT3}, {8*1024}")
            r2 = [st[2], st[3]]; rl = [cs[0], cs[1]]
            for rt in range(2):
                a.I(f"v_mul_f32 v{r2[rt]}, v{rstd[rt]}, v{rstd[rt]}")
                a.I(f"v_mul_f32 v{rl[rt]}, 0xbfb8aa3b, v{rstd[rt]}")
            E = [fx[0][0], fx[0][1]]
            assert fx[0][1] == fx[0][0] + 4
            E = fx[0][0]
            jobs = [(acc[0], 0, dO0, sT2, 0), (acc[1], 0, dO0, sT2, 1024), (acc[2], 1, dO1, sT2, 0), (acc[3], 1, dO1, sT2, 1024)]
            if extra:
                jobs.append((acc[4], 0, dO0, sT3, 0))
            for (c_, rt, d, so, off) in jobs:
                for i in range(8):
                    a.I(f"v_mul_f32 v{E+i}, v{c_+i}, v{rl[rt]}")
                for i in range(8):
                    a.I(f"v_exp_f32 v{E+i}, v{E+i}")
                for i in range(8):
                    a.I(f"v_mul_f32 v{c_+i}, v{c_+i}, v{c_+8+i}")
                for i in range(8):
                    a.I(f"v_add_f32 v{E+i}, 1.0, v{E+i}")
                for i in range(8):
                    a.I(f"v_rcp_f32 v{E+i}, v{E+i}")
                for i in range(8):
                    a.I(f"v_mul_f32 v{c_+i}, v{c_+i}, v{r2[rt]}")
                for i in range(8):
                    a.I(f"v_mul_f32 v{c_+i}, v{c_+i}, v{E+i}")
                pack8(a, c_ + 8, c_)
                a.I(f"buffer_store_dwordx4 {V(c_+8,4)}, v{vO}, {S(d,4)}, s{so} offen offset:{off}")
        elif kind == "q":
            srd(a, dO0, sWS, sWS + 1, 64 * 32 * 1024, add=QB)
            a.I(f"s_lshl_b32 s{sT3}, s{sT3}, 1")
            a.I(f"s_lshl_b32 s{sT}, s{sCOLH}, 4")
            a.I(f"s_add_u32 s{sT3}, s{sT3}, s{sT}")
            for rt, srt in ((0, sRT0), (1, sRT1)):
                a.I(f"s_lshl_b32 s{sT}, s{sRB}, 2")
                a.I(f"s_add_u32 s{sT}, s{sT}, s{srt}")
                a.I(f"s_lshl_b32 s{sT}, s{sT}, 5")
                a.I(f"s_add_u32 s{sT}, s{sT}, s{sT3}")
                a.I(f"s_lshl_b32 s{sT}, s{sT}, 10")
                a.I(f"s_add_u32 s{sT2}, s{sT}, 4096")
                for tl in range(2):
                    c_ = acc[2 * rt + tl]
                    for i in range(16):
                        a.I(f"v_mul_f32 v{c_+i}, v{c_+i}, v{rstd[rt]}")
                    pack8(a, c_, c_)
                    pack8(a, c_ + 4, c_ + 8)
                    so = sT if tl == 0 else sT2
                    a.I(f"buffer_store_dwordx4 {V(c_,4)}, v{vO}, {S(dO0,4)}, s{so} offen")
                    a.I(f"buffer_store_dwordx4 {V(c_+4,4)}, v{vO}, {S(dO0,4)}, s{so} offen offset:1024")
            a.I("s_cmp_lg_u32 s2, 255")
            a.I(f"s_cbranch_scc1 {P}_nz")
            srd(a, dO1, sWS, sWS + 1, 4096, add=FLB)
            a.I(f"v_lshlrev_b32 v{t[1]}, 3, v{vTID}")
            a.I(f"v_mov_b32 v{junk}, 0")
            a.I(f"v_mov_b32 v{junk+1}, 0")
            a.I(f"buffer_store_dwordx2 {V(junk,2)}, v{t[1]}, {S(dO1,4)}, 0 offen")
            a.L(f"{P}_nz")
        else:
            kv_epilogue(a, r, locals())
        a.I("s_endpgm")


def kv_epilogue(a, r, e):
    acc, fx, fw, t, rstd, vL, SLOT = e["acc"], e["fx"], e["fw"], e["t"], e["rstd"], e["vL"], e["SLOT"]
    aX, aW, vO = e["aX"], e["aW"], e["vO"]
    PIT = 112
    UNIT = 32 * PIT
    WSC = 4 * UNIT
    D = r.alloc(16, 4)
    KV = [r.alloc(16, 4) for _ in range(2)]
    WP = [r.alloc(4, 4) for _ in range(2)]
    FA = [r.alloc(4, 4) for _ in range(2)]
    FB = [r.alloc(4, 4) for _ in range(2)]
    ones = r.alloc(4, 4)
    T4 = r.alloc(4)
    aWr, aPh, aV, aP, sgn = aX[0][0], aX[0][1], aX[0][2], aX[0][3], aX[1][0]
    a.I(f"v_and_b32 v{t[1]}, 31, v{vL}")
    a.I(f"v_lshrrev_b32 v{t[2]}, 5, v{vL}")
    a.I(f"v_bfe_u32 v{t[3]}, v{vL}, 2, 2")
    a.I(f"v_and_b32 v{t[4]}, 3, v{vL}")
    a.I(f"v_bfe_u32 v{t[5]}, v{vL}, 4, 1")
    a.I(f"s_mul_i32 s{sT}, s{sWV}, {WSC}")
    a.I(f"v_mul_u32_u24 v{aWr}, {PIT}, v{t[1]}")
    a.I(f"v_lshl_add_u32 v{aWr}, v{t[2]}, 4, v{aWr}")
    a.I(f"v_add_u32 v{aWr}, s{sT}, v{aWr}")
    a.I(f"v_and_b32 v{t[6]}, 1, v{t[4]}")
    a.I(f"v_lshlrev_b32 v{t[6]}, 4, v{t[6]}")
    a.I(f"v_lshrrev_b32 v{t[7]}, 1, v{t[4]}")
    a.I(f"v_lshl_add_u32 v{t[6]}, v{t[7]}, 3, v{t[6]}")
    a.I(f"v_lshl_add_u32 v{t[7]}, v{t[2]}, 3, v{t[3]}")
    a.I(f"v_mul_u32_u24 v{t[7]}, {PIT}, v{t[7]}")
    a.I(f"v_add_u32 v{t[7]}, s{sT}, v{t[7]}")
    a.I(f"v_lshl_add_u32 v{aPh}, v{t[5]}, 5, v{t[7]}")
    a.I(f"v_add_u32 v{aPh}, v{aPh}, v{t[6]}")
    a.I(f"v_add_u32 v{t[6]}, 64, v{t[6]}")
    a.I(f"v_cmp_eq_u32 vcc, 0, v{t[5]}")
    a.I(f"v_mov_b32 v{aV}, 96")
    a.I(f"v_cndmask_b32 v{aV}, v{aV}, v{t[6]}, vcc")
    a.I(f"v_add_u32 v{aV}, v{aV}, v{t[7]}")
    a.I(f"v_lshl_add_u32 v{aP}, v{t[2]}, 2, v{t[3]}")
    a.I(f"v_lshlrev_b32 v{aP}, 5, v{aP}")
    a.I(f"v_lshl_add_u32 v{aP}, v{t[4]}, 3, v{aP}")
    a.I(f"s_lshl_b32 s{sT2}, s{sWV}, 10")
    a.I(f"s_add_u32 s{sT2}, s{sT2}, {3*SLOT}")
    a.I(f"v_add_u32 v{aP}, s{sT2}, v{aP}")
    for hd in range(2):
        a.I(f"ds_read_b64_tr_b16 {V(WP[hd],2)}, v{aP} offset:{512*hd}")
        a.I(f"ds_read_b64_tr_b16 {V(WP[hd]+2,2)}, v{aP} offset:{512*hd+256}")
    a.I(f"v_mov_b32 v{sgn}, 0x80008000")
    a.I(f"v_cndmask_b32 v{sgn}, v{sgn}, 0, vcc")
    for i in range(4):
        a.I(f"v_mov_b32 v{ones+i}, 0x3f803f80")
    a.I(f"v_mul_u32_u24 v{t[6]}, {PIT}, v{t[1]}")
    a.I(f"v_add_u32 v{t[6]}, s{sT}, v{t[6]}")
    for u in range(4):
        a.I(f"ds_write_b128 v{t[6]}, {V(ones,4)} offset:{u*UNIT+96}")
    for rt in range(2):
        for tl in range(2):
            c_ = acc[2 * rt + tl]
            for i in range(16):
                a.I(f"v_mul_f32 v{c_+i}, v{c_+i}, v{rstd[rt]}")
            pack8(a, c_, c_)
            pack8(a, c_ + 4, c_ + 8)
        cv = acc[2 * rt + 1]
        for hd in range(2):
            a.I(f"ds_write_b128 v{aWr}, {V(cv+4*hd,4)} offset:{(2*rt+hd)*UNIT+64}")
    a.I("s_waitcnt lgkmcnt(0)")
    for hd in range(2):
        for i in range(4):
            a.I(f"v_xor_b32 v{WP[hd]+i}, v{WP[hd]+i}, v{sgn}")
    for rt in range(2):
        ck = acc[2 * rt]
        for hd in range(2):
            Dd = D if hd == 0 else acc[2 * rt + 1]
            a.I(f"{MFMA} {V(Dd,16)}, {V(WP[hd],4)}, {V(ck+4*hd,4)}, 0")
        for hd in range(2):
            Dd = D if hd == 0 else acc[2 * rt + 1]
            softmax_pm(a, Dd, T4, sL2E)
            pack8(a, Dd, Dd)
            pack8(a, Dd + 4, Dd + 8)
            u = 2 * rt + hd
            a.I(f"ds_write_b128 v{aWr}, {V(Dd,4)} offset:{u*UNIT}")
            a.I(f"ds_write_b128 v{aWr}, {V(Dd+4,4)} offset:{u*UNIT+32}")
        a.I("s_waitcnt lgkmcnt(0)")
    first = [True, True]
    for rt in range(2):
        for hd in range(2):
            u = 2 * rt + hd
            for kk in range(2):
                o = u * UNIT + kk * 16 * PIT
                a.I(f"ds_read_b64_tr_b16 {V(FA[kk],2)}, v{aPh} offset:{o}")
                a.I(f"ds_read_b64_tr_b16 {V(FA[kk]+2,2)}, v{aPh} offset:{o+4*PIT}")
                a.I(f"ds_read_b64_tr_b16 {V(FB[kk],2)}, v{aV} offset:{o}")
                a.I(f"ds_read_b64_tr_b16 {V(FB[kk]+2,2)}, v{aV} offset:{o+4*PIT}")
            for kk in range(2):
                a.I(f"s_waitcnt lgkmcnt({4*(1-kk)})")
                cc = "0" if first[hd] else V(KV[hd], 16)
                first[hd] = False
                a.I(f"{MFMA} {V(KV[hd],16)}, {V(FA[kk],4)}, {V(FB[kk],4)}, {cc}")
    a.I(f"v_add_u32 v{aWr}, s{sT}, v{vO}")
    for hd in range(2):
        for q in range(4):
            a.I(f"ds_write_b128 v{aWr}, {V(KV[hd]+4*q,4)} offset:{hd*4096+q*1024}")
    a.I(f"s_mul_i32 s{sT}, s{sRH}, {WSC}")
    a.I(f"s_lshl_b32 s{sT2}, s{sCQ}, 10")
    a.I(f"s_add_u32 s{sT}, s{sT}, s{sT2}")
    a.I(f"v_add_u32 v{aV}, s{sT}, v{vO}")
    a.I(f"v_add_u32 v{aP}, {4*WSC}, v{aV}")
    a.I("s_waitcnt lgkmcnt(0)")
    a.I("s_barrier")
    for hd in range(2):
        for q in range(4):
            ad = aV if q < 2 else aP
            a.I(f"ds_read_b128 {V(KV[hd]+4*q,4)}, v{ad} offset:{(q&1)*2*WSC + hd*4096}")
    srd(a, dO0, sWS, sWS + 1, 8 * 32 * 4096, add=KVB)
    a.I(f"s_lshl_b32 s{sT}, s{sRB}, 5")
    a.I(f"s_lshl_b32 s{sT3}, s{sG}, 2")
    a.I(f"s_add_u32 s{sT}, s{sT}, s{sT3}")
    a.I(f"s_lshl_b32 s{sT3}, s{sRH}, 1")
    a.I(f"s_add_u32 s{sT}, s{sT}, s{sT3}")
    a.I(f"s_lshl_b32 s{sT}, s{sT}, 12")
    a.I(f"s_add_u32 s{sT}, s{sT}, s{sT2}")
    a.I(f"s_add_u32 s{sT2}, s{sT}, 4096")
    for hd in range(2):
        a.I(f"s_waitcnt lgkmcnt({4*(1-hd)})")
        k = KV[hd]
        for i in range(4):
            a.I(f"v_add_f32 v{k+i}, v{k+i}, v{k+4+i}")
            a.I(f"v_add_f32 v{k+8+i}, v{k+8+i}, v{k+12+i}")
        for i in range(4):
            a.I(f"v_add_f32 v{k+i}, v{k+i}, v{k+8+i}")
        a.I(f"buffer_store_dwordx4 {V(k,4)}, v{vO}, {S(dO0,4)}, s{sT if hd == 0 else sT2} offen")


def gen_k1():
    a = Asm()
    a.I("s_cmp_ge_u32 s2, 256")
    a.I("s_cbranch_scc1 k1_end")
    a.I("s_load_dwordx4 s[4:7], s[0:1], 0")
    a.I("s_load_dwordx2 s[8:9], s[0:1], 16")
    a.I("s_load_dwordx4 s[12:15], s[0:1], 40")
    a.I("s_load_dwordx2 s[16:17], s[0:1], 80")
    a.I("v_mov_b32 v1, v0")
    a.I("v_lshrrev_b32 v2, 6, v0")
    a.I("v_and_b32 v0, 63, v0")
    a.I(f"v_readfirstlane_b32 s{sWV}, v2")
    a.I(f"s_and_b32 s{sXCD}, s2, 7")
    a.I(f"s_lshr_b32 s{sJ}, s2, 3")
    a.I(f"s_and_b32 s{sROWQ}, s{sXCD}, 3")
    a.I(f"s_lshr_b32 s{sCOLH}, s{sXCD}, 2")
    a.I(f"s_cmp_lt_u32 s{sJ}, 20")
    a.I("s_cbranch_scc1 k1_ffn")
    a.I(f"s_cmp_lt_u32 s{sJ}, 28")
    a.I("s_cbranch_scc1 k1_kv")
    k1_type(a, "q")
    a.L("k1_end")
    a.I("s_endpgm")
    k1_type(a, "kv")
    k1_type(a, "ffn")
    return a


def gen_k2():
    a = Asm()
    DEPTH = 12
    NH, NO = 22, 8
    POLL_AT = 16
    RING = DEPTH * 2048
    LKV = 4 * RING
    LPH = LKV + 16384
    LFL = LPH + 4096
    LDS_TOTAL = LFL + 64
    RP = 272
    assert 4 * 64 * RP <= 4 * RING
    sXp, sWPH, sWO_, sW2, sOUT, sWSp = 4, 8, 10, 12, 14, 16
    dH0, dH1, dW2, dWOd, dOf0, dOf1, dXr, dOut = 20, 24, 28, 32, 36, 40, 44, 48
    sW, sGr, sJ2, sRB2, sCB, sA, sB, sM, sT_, sT2_, sL = 52, 53, 54, 55, 56, 57, 58, 59, 60, 61, 62
    sCNT = 63
    a.I("s_cmp_ge_u32 s2, 256")
    a.I("s_cbranch_scc1 k2_end")
    a.I("s_load_dwordx2 s[4:5], s[0:1], 0")
    a.I("s_load_dwordx4 s[8:11], s[0:1], 16")
    a.I("s_load_dwordx4 s[12:15], s[0:1], 56")
    a.I("s_load_dwordx2 s[16:17], s[0:1], 80")
    vL, vTID = 0, 1
    a.I("v_mov_b32 v1, v0")
    a.I("v_lshrrev_b32 v2, 6, v0")
    a.I("v_and_b32 v0, 63, v0")
    a.I(f"v_readfirstlane_b32 s{sW}, v2")
    code_prefetch(a, 2, 252, 8192, 512, vTID)
    a.I(f"s_and_b32 s{sGr}, s2, 7")
    a.I(f"s_lshr_b32 s{sJ2}, s2, 3")
    a.I(f"s_and_b32 s{sRB2}, s{sJ2}, 3")
    a.I(f"s_lshl_b32 s{sT_}, s{sGr}, 2")
    a.I(f"s_add_u32 s{sRB2}, s{sRB2}, s{sT_}")
    a.I(f"s_lshr_b32 s{sCB}, s{sJ2}, 2")
    a.I(f"s_cmp_ge_u32 s{sW}, 4")
    a.I("s_cbranch_scc1 k2_prod")
    r = Regs(2, 252, "v")
    vA = r.alloc(); vB0 = r.alloc(); vB1 = r.alloc(); aB = [r.alloc(), r.alloc()]
    t = [r.alloc() for _ in range(6)]
    acc = [r.alloc(16, 4) for _ in range(4)]
    fa = [[r.alloc(4, 4) for _ in range(2)] for _ in range(DEPTH)]
    fb = [[r.alloc(4, 4) for _ in range(2)] for _ in range(2)]
    xr = [r.alloc(4, 4) for _ in range(2)]
    a.I(f"v_lshlrev_b32 v{vA}, 4, v{vL}")
    a.I(f"s_lshl_b32 s{sT_}, s{sW}, 10")
    a.I(f"v_add_u32 v{vA}, s{sT_}, v{vA}")
    a.I(f"v_lshrrev_b32 v{t[0]}, 3, v{vL}")
    a.I(f"v_and_b32 v{t[1]}, 7, v{vL}")
    a.I(f"v_and_b32 v{t[2]}, 2, v{t[0]}")
    a.I(f"v_lshlrev_b32 v{t[2]}, 1, v{t[2]}")
    a.I(f"v_xor_b32 v{t[2]}, v{t[2]}, v{t[1]}")
    a.I(f"v_lshlrev_b32 v{t[2]}, 4, v{t[2]}")
    a.I(f"v_lshl_add_u32 v{vB0}, v{t[0]}, 10, v{t[2]}")
    a.I(f"s_lshl_b32 s{sT_}, s{sW}, 14")
    a.I(f"s_lshl_b32 s{sT2_}, s{sCB}, 7")
    a.I(f"s_add_u32 s{sT_}, s{sT_}, s{sT2_}")
    a.I(f"v_add_u32 v{vB0}, s{sT_}, v{vB0}")
    a.I(f"v_add_u32 v{vB1}, 8192, v{vB0}")
    a.I(f"s_mul_i32 s{sM}, s{sW}, {RING}")
    a.I("s_waitcnt lgkmcnt(0)")
    a.I(f"s_mul_i32 s{sT_}, s{sRB2}, {2*86*1024}")
    srd(a, dH0, sWSp, sWSp + 1, 86 * 1024, add=f"s{sT_}")
    a.I(f"s_add_u32 s{sT_}, s{sT_}, {86*1024}")
    srd(a, dH1, sWSp, sWSp + 1, 86 * 1024, add=f"s{sT_}")
    srd(a, dW2, sW2, sW2 + 1, 1376 * 1024)
    a.I(f"s_mov_b32 s{sA}, 0")
    a.I(f"s_mov_b32 s{sB}, 0")

    vm = []

    def issueA(step):
        s = step % DEPTH
        if step < NH:
            a.I(f"buffer_load_dwordx4 {V(fa[s][0],4)}, v{vA}, {S(dH0,4)}, s{sA} offen")
            a.I(f"buffer_load_dwordx4 {V(fa[s][1],4)}, v{vA}, {S(dH1,4)}, s{sA} offen")
        else:
            a.I(f"buffer_load_dwordx4 {V(fa[s][0],4)}, v{vA}, {S(dOf0,4)}, s{sA} offen sc1")
            a.I(f"buffer_load_dwordx4 {V(fa[s][1],4)}, v{vA}, {S(dOf1,4)}, s{sA} offen sc1")
        vm.extend([("A", step)] * 2)
        if step == NH - 1:
            a.I(f"s_mov_b32 s{sA}, 0")
        else:
            a.I(f"s_add_u32 s{sA}, s{sA}, 4096")

    def issueB(step):
        s = step % DEPTH
        d = dW2 if step < NH else dWOd
        a.I(f"s_add_u32 m0, s{sM}, {s*2048}")
        a.I(f"buffer_load_dwordx4 v{vB0}, {S(d,4)}, s{sB} offen lds")
        a.I(f"s_add_u32 m0, s{sM}, {s*2048+1024}")
        a.I(f"buffer_load_dwordx4 v{vB1}, {S(d,4)}, s{sB} offen lds")
        vm.extend([("B", step)] * 2)
        if step == NH - 1:
            a.I(f"s_mov_b32 s{sB}, 0")
        else:
            a.I(f"s_add_u32 s{sB}, s{sB}, 65536")

    def wait_for(tags):
        hit = [i for i, tg in enumerate(vm) if tg in tags]
        if not hit:
            return
        idx = max(hit)
        n = len(vm) - 1 - idx
        a.I(f"s_waitcnt vmcnt({n})")
        del vm[:idx + 1]

    for st in range(DEPTH):
        issueB(st); issueA(st)
    srd(a, dWOd, sWO_, sWO_ + 1, 512 * 1024)
    a.I(f"s_lshl_b32 s{sT_}, s{sRB2}, 16")
    a.I(f"s_add_u32 s{sT_}, s{sT_}, {OB}")
    srd(a, dOf0, sWSp, sWSp + 1, 32 * 1024, add=f"s{sT_}")
    a.I(f"s_add_u32 s{sT_}, s{sT_}, {32*1024}")
    srd(a, dOf1, sWSp, sWSp + 1, 32 * 1024, add=f"s{sT_}")
    a.I(f"s_lshl_b32 s{sT_}, s{sRB2}, 16")
    srd(a, dXr, sXp, sXp + 1, 65536, add=f"s{sT_}")
    srd(a, dOut, sOUT, sOUT + 1, 65536, add=f"s{sT_}")
    a.I(f"v_lshrrev_b32 v{t[0]}, 5, v{vL}")
    a.I(f"v_bfe_u32 v{t[1]}, v{vL}, 2, 2")
    a.I(f"v_lshl_add_u32 v{t[0]}, v{t[0]}, 2, v{t[1]}")
    a.I(f"v_lshlrev_b32 v{t[0]}, 7, v{t[0]}")
    a.I(f"v_and_b32 v{t[2]}, 3, v{vL}")
    a.I(f"v_lshl_add_u32 v{t[0]}, v{t[2]}, 3, v{t[0]}")
    a.I(f"v_add_u32 v{t[0]}, s{sM}, v{t[0]}")
    a.I(f"v_bfe_u32 v{t[2]}, v{vL}, 4, 1")
    a.I(f"v_and_b32 v{t[1]}, 2, v{t[1]}")
    a.I(f"v_or_b32 v{t[2]}, v{t[2]}, v{t[1]}")
    a.I(f"v_lshl_add_u32 v{aB[0]}, v{t[2]}, 5, v{t[0]}")
    a.I(f"v_xor_b32 v{t[2]}, 2, v{t[2]}")
    a.I(f"v_lshl_add_u32 v{aB[1]}, v{t[2]}, 5, v{t[0]}")
    a.I(f"v_mov_b32 v{t[5]}, {LFL}")
    a.I("s_barrier")

    def readsB(step):
        s = step % DEPTH
        f = fb[step & 1]
        for ct in range(2):
            a.I(f"ds_read_b64_tr_b16 {V(f[ct],2)}, v{aB[ct]} offset:{s*2048}")
            a.I(f"ds_read_b64_tr_b16 {V(f[ct]+2,2)}, v{aB[ct]} offset:{s*2048+1024}")

    NS = NH + NO
    nextA = DEPTH; nextB = DEPTH
    wait_for({("B", 0)})
    readsB(0)
    for st in range(NS):
        if st == POLL_AT:
            a.I(f"s_mov_b32 s{sCNT}, 0")
            a.L("k2_fl")
            a.I(f"ds_read_b32 v{t[4]}, v{t[5]}")
            a.I("s_waitcnt lgkmcnt(0)")
            a.I(f"v_readfirstlane_b32 s{sT_}, v{t[4]}")
            a.I(f"s_add_u32 s{sCNT}, s{sCNT}, 1")
            a.I(f"s_cmp_gt_u32 s{sCNT}, 0x40000")
            a.I("s_cbranch_scc1 k2_fl_done")
            a.I(f"s_cmp_eq_u32 s{sT_}, 0")
            a.I("s_cbranch_scc0 k2_fl_done")
            a.I("s_sleep 1")
            a.I("s_branch k2_fl")
            a.L("k2_fl_done")
            while nextA < NS and nextA < st + DEPTH:
                issueA(nextA); nextA += 1
        if st + 1 < NS:
            wait_for({("B", st + 1), ("A", st)})
            a.I("s_waitcnt lgkmcnt(0)")
            readsB(st + 1)
        else:
            wait_for({("A", st)})
            a.I("s_waitcnt lgkmcnt(0)")
        s = st % DEPTH
        f = fb[st & 1]
        mm = []
        for rt in range(2):
            for ct in range(2):
                c_ = acc[2 * rt + ct]
                cc = "0" if st == 0 else V(c_, 16)
                mm.append(f"{MFMA} {V(c_,16)}, {V(f[ct],4)}, {V(fa[s][rt],4)}, {cc}")
        for m in mm:
            a.I(m)
        if nextB < NS:
            issueB(nextB); nextB += 1
        if nextA < NS and (nextA < NH or st >= POLL_AT) and nextA <= st + DEPTH:
            issueA(nextA); nextA += 1
        if st == NS - 6:
            a.I(f"v_lshrrev_b32 v{t[0]}, 3, v{vTID}")
            a.I(f"v_and_b32 v{t[1]}, 7, v{vTID}")
            a.I(f"v_lshlrev_b32 v{t[2]}, 10, v{t[0]}")
            a.I(f"v_lshl_add_u32 v{t[2]}, v{t[1]}, 4, v{t[2]}")
            a.I(f"s_lshl_b32 s{sT_}, s{sCB}, 7")
            a.I(f"v_add_u32 v{t[2]}, s{sT_}, v{t[2]}")
            a.I(f"v_add_u32 v{t[3]}, 32768, v{t[2]}")
            a.I(f"buffer_load_dwordx4 {V(xr[0],4)}, v{t[2]}, {S(dXr,4)}, 0 offen")
            a.I(f"buffer_load_dwordx4 {V(xr[1],4)}, v{t[3]}, {S(dXr,4)}, 0 offen")
            vm.extend([("X", 0)] * 2)
    assert nextA == NS and nextB == NS
    a.I("s_barrier")
    a.I(f"v_and_b32 v{aB[0]}, 31, v{vL}")
    a.I(f"v_mul_u32_u24 v{aB[0]}, {RP}, v{aB[0]}")
    a.I(f"v_lshrrev_b32 v{aB[1]}, 5, v{vL}")
    a.I(f"v_lshl_add_u32 v{aB[0]}, v{aB[1]}, 4, v{aB[0]}")
    a.I(f"s_mul_i32 s{sT_}, s{sW}, {64*RP}")
    a.I(f"v_add_u32 v{aB[0]}, s{sT_}, v{aB[0]}")
    for rt in range(2):
        for ct in range(2):
            for q in range(4):
                a.I(f"ds_write_b128 v{aB[0]}, {V(acc[2*rt+ct]+4*q,4)} offset:{rt*32*RP + ct*128 + q*32}")
    a.I(f"v_mul_u32_u24 v{aB[1]}, {RP}, v{t[0]}")
    a.I(f"v_lshl_add_u32 v{aB[1]}, v{t[1]}, 5, v{aB[1]}")
    a.I("s_waitcnt lgkmcnt(0)")
    a.I("s_barrier")
    Rr = acc[0]
    for hf in range(2):
        for w in range(4):
            for p in range(2):
                a.I(f"ds_read_b128 {V(Rr + hf*32 + w*8 + p*4, 4)}, v{aB[1]} offset:{w*64*RP + hf*32*RP + p*16}")
    a.I("s_waitcnt vmcnt(0)")
    for hf in range(2):
        a.I(f"s_waitcnt lgkmcnt({8*(1-hf)})")
        b = Rr + hf * 32
        for i in range(8):
            a.I(f"v_add_f32 v{b+i}, v{b+i}, v{b+8+i}")
            a.I(f"v_add_f32 v{b+16+i}, v{b+16+i}, v{b+24+i}")
        for i in range(4):
            a.I(f"v_lshlrev_b32 v{b+8+2*i}, 16, v{xr[hf]+i}")
            a.I(f"v_and_b32 v{b+8+2*i+1}, 0xffff0000, v{xr[hf]+i}")
        for i in range(8):
            a.I(f"v_add_f32 v{b+i}, v{b+i}, v{b+16+i}")
        for i in range(8):
            a.I(f"v_add_f32 v{b+i}, v{b+i}, v{b+8+i}")
        pack8(a, b + 16, b)
        a.I(f"buffer_store_dwordx4 {V(b+16,4)}, v{t[2+hf]}, {S(dOut,4)}, 0 offen")
    a.L("k2_end")
    a.I("s_endpgm")

    a.L("k2_prod")
    r = Regs(2, 252, "v")
    t = [r.alloc() for _ in range(8)]
    vO = r.alloc(); vK = r.alloc(); aP = r.alloc(); sgn = r.alloc(); aKW = r.alloc()
    KP = [r.alloc(16, 4) for _ in range(4)]
    QF = [r.alloc(4, 4) for _ in range(2)]
    WP = r.alloc(4, 4)
    D = [r.alloc(16, 4) for _ in range(2)]
    O = [r.alloc(16, 4) for _ in range(2)]
    T4 = [r.alloc(4) for _ in range(2)]
    sPW = 64
    dKV, dQ, dPH, dOF, dFL = 20, 24, 28, 32, 36
    a.I(f"s_sub_u32 s{sPW}, s{sW}, 4")
    a.I(f"v_lshlrev_b32 v{vO}, 4, v{vL}")
    a.I(f"v_and_b32 v{t[0]}, 31, v{vL}")
    a.I(f"v_min_u32 v{t[0]}, 16, v{t[0]}")
    a.I(f"v_and_b32 v{t[1]}, 32, v{vL}")
    a.I(f"v_add_u32 v{t[0]}, v{t[0]}, v{t[1]}")
    a.I(f"v_lshlrev_b32 v{vK}, 4, v{t[0]}")
    a.I("s_waitcnt lgkmcnt(0)")
    srd(a, dKV, sWSp, sWSp + 1, 8 * 32 * 4096, add=KVB)
    srd(a, dQ, sWSp, sWSp + 1, 64 * 32 * 1024, add=QB)
    srd(a, dPH, sWPH, sWPH + 1, 32 * 512)
    a.I(f"s_lshl_b32 s{sT_}, s{sGr}, 3")
    a.I(f"s_lshl_b32 s{sT2_}, s{sPW}, 1")
    a.I(f"s_add_u32 s{sT_}, s{sT_}, s{sT2_}")
    a.I(f"s_lshl_b32 s{sT_}, s{sT_}, 5")
    a.I(f"s_add_u32 s{sT_}, s{sT_}, s{sJ2}")
    a.I(f"s_lshl_b32 s{sA}, s{sT_}, 10")
    a.I(f"s_add_u32 s{sB}, s{sA}, 32768")
    a.I(f"s_lshl_b32 s{sM}, s{sPW}, 10")
    a.I(f"s_add_u32 s{sM}, s{sM}, {LPH}")
    a.I(f"s_lshl_b32 s{sT_}, s{sJ2}, 9")
    a.I(f"s_mov_b32 m0, s{sM}")
    a.I(f"buffer_load_dwordx4 v{vO}, {S(dPH,4)}, s{sT_} offen lds")
    a.I(f"buffer_load_dwordx4 {V(QF[0],4)}, v{vO}, {S(dQ,4)}, s{sA} offen")
    a.I(f"buffer_load_dwordx4 {V(QF[1],4)}, v{vO}, {S(dQ,4)}, s{sB} offen")
    a.I(f"s_lshl_b32 s{sT_}, s{sPW}, 6")
    a.I(f"s_add_u32 s{sT_}, s{sT_}, s{sJ2}")
    a.I(f"s_lshl_b32 s{sT_}, s{sT_}, 12")
    a.I(f"s_add_u32 s{sT2_}, s{sT_}, {32*4096}")
    for p, so in ((0, sT_), (1, sT2_)):
        for q in range(4):
            a.I(f"buffer_load_dwordx4 {V(KP[p]+4*q,4)}, v{vK}, {S(dKV,4)}, s{so} offen offset:{q*1024}")
    srd(a, dOF, sWSp, sWSp + 1, 64 * 32 * 1024, add=OB)
    srd(a, dFL, sWSp, sWSp + 1, 4096, add=FLB)
    a.I(f"s_mov_b32 s{sL}, {LOG2E}")
    a.I(f"v_mov_b32 v{t[2]}, {LFL}")
    a.I(f"v_mov_b32 v{t[3]}, 0")
    a.I(f"ds_write_b32 v{t[2]}, v{t[3]}")
    a.I(f"v_lshrrev_b32 v{t[4]}, 5, v{vL}")
    a.I(f"v_bfe_u32 v{t[5]}, v{vL}, 2, 2")
    a.I(f"v_lshl_add_u32 v{aP}, v{t[4]}, 2, v{t[5]}")
    a.I(f"v_lshlrev_b32 v{aP}, 5, v{aP}")
    a.I(f"v_and_b32 v{t[5]}, 3, v{vL}")
    a.I(f"v_lshl_add_u32 v{aP}, v{t[5]}, 3, v{aP}")
    a.I(f"v_add_u32 v{aP}, s{sM}, v{aP}")
    a.I(f"v_bfe_u32 v{t[5]}, v{vL}, 4, 1")
    a.I(f"v_mul_u32_u24 v{sgn}, 0x8000, v{t[5]}")
    a.I(f"v_lshl_or_b32 v{sgn}, v{sgn}, 16, v{sgn}")
    a.I(f"s_lshl_b32 s{sT_}, s{sPW}, 12")
    a.I(f"s_add_u32 s{sT_}, s{sT_}, {LKV}")
    a.I(f"v_add_u32 v{aKW}, s{sT_}, v{vO}")
    a.I("s_waitcnt vmcnt(0)")
    a.I(f"ds_read_b64_tr_b16 {V(WP,2)}, v{aP}")
    a.I(f"ds_read_b64_tr_b16 {V(WP+2,2)}, v{aP} offset:256")
    for i in range(16):
        a.I(f"v_add_f32 v{KP[0]+i}, v{KP[0]+i}, v{KP[1]+i}")
    for q in range(4):
        a.I(f"ds_write_b128 v{aKW}, {V(KP[0]+4*q,4)} offset:{q*1024}")
    a.I("s_waitcnt lgkmcnt(0)")
    a.I("s_barrier")
    a.I(f"v_add_u32 v{aKW}, {LKV}, v{vO}")
    for p in range(4):
        for q in range(4):
            a.I(f"ds_read_b128 {V(KP[p]+4*q,4)}, v{aKW} offset:{p*4096+q*1024}")
    for i in range(4):
        a.I(f"v_xor_b32 v{WP+i}, v{WP+i}, v{sgn}")
    for rt in range(2):
        a.I(f"{MFMA} {V(D[rt],16)}, {V(WP,4)}, {V(QF[rt],4)}, 0")
    a.I("s_waitcnt lgkmcnt(0)")
    for i in range(16):
        a.I(f"v_add_f32 v{KP[0]+i}, v{KP[0]+i}, v{KP[1]+i}")
        a.I(f"v_add_f32 v{KP[2]+i}, v{KP[2]+i}, v{KP[3]+i}")
    for i in range(16):
        a.I(f"v_add_f32 v{KP[0]+i}, v{KP[0]+i}, v{KP[2]+i}")
    pack8(a, KP[1], KP[0])
    pack8(a, KP[1] + 4, KP[0] + 8)
    for rt in range(2):
        softmax_pm(a, D[rt], T4[rt], sL)
        pack8(a, D[rt], D[rt])
        pack8(a, D[rt] + 4, D[rt] + 8)
        a.I(f"{MFMA} {V(O[rt],16)}, {V(KP[1],4)}, {V(D[rt],4)}, 0")
        a.I(f"{MFMA} {V(O[rt],16)}, {V(KP[1]+4,4)}, {V(D[rt]+4,4)}, {V(O[rt],16)}")
    for rt in range(2):
        o = O[rt]
        a.I(f"v_add_f32 v{o+8}, 0x358637bd, v{o+8}")
        a.I(f"v_rcp_f32 v{o+8}, v{o+8}")
        for i in range(8):
            a.I(f"v_mul_f32 v{o+i}, v{o+i}, v{o+8}")
        pack8(a, o + 12, o)
        a.I(f"buffer_store_dwordx4 {V(o+12,4)}, v{vO}, {S(dOF,4)}, s{sA if rt == 0 else sB} offen sc1")
    a.I(f"s_lshl_b32 s{sT_}, s{sGr}, 2")
    a.I(f"s_add_u32 s{sT_}, s{sT_}, s{sPW}")
    a.I(f"s_lshl_b32 s{sT_}, s{sT_}, 7")
    a.I(f"s_lshl_b32 s{sT2_}, s{sJ2}, 2")
    a.I(f"s_add_u32 s{sT_}, s{sT_}, s{sT2_}")
    a.I(f"v_mov_b32 v{t[3]}, 1")
    a.I(f"v_mov_b32 v{t[4]}, 0")
    a.I("s_mov_b64 exec, 1")
    a.I("s_waitcnt vmcnt(0)")
    a.I(f"buffer_store_dword v{t[3]}, v{t[4]}, {S(dFL,4)}, s{sT_} offen sc1")
    a.I("s_mov_b64 exec, -1")
    a.I(f"s_cmp_lg_u32 s{sPW}, 0")
    a.I("s_cbranch_scc1 k2_pend")
    a.I(f"v_and_b32 v{t[4]}, 31, v{vL}")
    a.I(f"v_lshlrev_b32 v{t[4]}, 2, v{t[4]}")
    a.I(f"s_lshl_b32 s{sT_}, s{sRB2}, 7")
    a.I(f"s_mov_b32 s{sCNT}, 0")
    a.L("k2_poll")
    a.I(f"buffer_load_dword v{t[5]}, v{t[4]}, {S(dFL,4)}, s{sT_} offen sc1")
    a.I("s_waitcnt vmcnt(0)")
    a.I(f"v_cmp_ne_u32 vcc, 1, v{t[5]}")
    a.I(f"s_add_u32 s{sCNT}, s{sCNT}, 1")
    a.I(f"s_cmp_gt_u32 s{sCNT}, 0x10000")
    a.I("s_cbranch_scc1 k2_pdone")
    a.I("s_cmp_eq_u64 vcc, 0")
    a.I("s_cbranch_scc1 k2_pdone")
    a.I("s_sleep 2")
    a.I("s_branch k2_poll")
    a.L("k2_pdone")
    a.I(f"ds_write_b32 v{t[2]}, v{t[3]}")
    a.I("s_waitcnt lgkmcnt(0)")
    a.L("k2_pend")
    a.I("s_endpgm")
    return a, LDS_TOTAL


def descriptor(name, vgpr):
    return f""".section .rodata,"a"
.p2align 6
.amdhsa_kernel {name}
  .amdhsa_next_free_vgpr {vgpr}
  .amdhsa_next_free_sgpr 102
  .amdhsa_accum_offset {vgpr}
  .amdhsa_group_segment_fixed_size 0
  .amdhsa_kernarg_size 88
  .amdhsa_user_sgpr_count 2
  .amdhsa_user_sgpr_kernarg_segment_ptr 1
  .amdhsa_system_sgpr_workgroup_id_x 1
.end_amdhsa_kernel
"""


def main(out):
    ref = open(f"cdna_kernels/{NAME}.s.ref").read().split("\n")
    head = [l for l in ref if l.startswith(";") and "@launch" not in l and "Override" not in l and "grid=ceil" not in l]
    k1 = gen_k1()
    k2, lds2 = gen_k2()
    v = "-v" in sys.argv
    n1 = k1.fix_hazards(v); n2 = k2.fix_hazards(v)
    txt = "\n".join(head) + "\n"
    txt += f"; @launch kernel={K1} grid=(256,1,1) block=(512,1,1) lds=160128\n"
    txt += f"; @launch kernel={K2} grid=(256,1,1) block=(512,1,1) lds={lds2}\n"
    txt += '.amdgcn_target "amdgcn-amd-amdhsa--gfx950"\n.text\n'
    for name, k in ((K1, k1), (K2, k2)):
        txt += f".globl {name}\n.p2align 8\n.type {name},@function\n{name}:\n" + k.text()
    txt += ".fill 2048, 4, 0xbf810000\n"
    txt += descriptor(K1, 256) + descriptor(K2, 256)
    open(out, "w").write(txt)
    print(f"written {out}: hazard pads k1={n1} k2={n2}, k2 lds={lds2}")


if __name__ == "__main__":
    out = [x for x in sys.argv[1:] if not x.startswith("-")]
    main(out[0] if out else f"cdna_kernels/{NAME}.s")
```

```python
import sys, os
sys.path.insert(0, os.path.dirname(os.path.abspath(__file__)))
from asm import Asm, Regs, V, S

NAME = "parallel_sum__linear_kernel_hedgehog__glu_gated_swiglu__prompt"
K1 = "hh_k1_kernel"
K2 = "hh_k2_kernel"

HB = 0
QB = 0x600000
KVB = 0x800000
OB = 0x900000
FLB = 0xB00000
LOG2E = 0x3fb8aa3b
RS1 = 2752
RSQ = 3072
MFMA = "v_mfma_f32_32x32x16_bf16"
OPT = dict(prefetch_code=True, stamp="--stamp" in sys.argv, nodot="--nodot" in sys.argv,
           nodma="--nodma" in sys.argv, nomfma="--nomfma" in sys.argv, nolds="--nolds" in sys.argv,
           norot="--norot" in sys.argv, depth=12, poll=18, stagger=1, pfw2=1, stf=0, k2noa=0, k2nob=0, k2nom=0, k2nop=0, rotc=3, rotr=0, pfat=6)
for _x in sys.argv:
    if _x.startswith("--") and "=" in _x:
        _k, _v = _x[2:].split("=")
        OPT[_k] = int(_v)
STF = ["", " sc1", " nt", " sc0 sc1"][OPT["stf"]]
STB = 0xC00000


def stamp(a, i):
    if OPT["stamp"]:
        a.I(f"{'s_memtime' if '--cyc' in sys.argv else 's_memrealtime'} s[{80+2*i}:{81+2*i}]")
        a.I("s_waitcnt lgkmcnt(0)")


def stamp_init(a):
    if OPT["stamp"]:
        for i in range(80, 96):
            a.I(f"s_mov_b32 s{i}, 0")
        a.I("s_memtime s[100:101]")
        stamp(a, 0)


def stamp_out(a, kern, sws, swv, d):
    if not OPT["stamp"]:
        return
    a.I("s_waitcnt vmcnt(0)")
    a.I("s_memtime s[92:93]")
    stamp(a, 7)
    a.I("s_sub_u32 s92, s92, s100")
    srd(a, d, sws, sws + 1, 2 * 256 * 8 * 32, add=STB)
    a.I(f"s_lshl_b32 s98, s2, 3")
    a.I(f"s_add_u32 s98, s98, s{swv}")
    a.I(f"s_lshl_b32 s98, s98, 5")
    a.I(f"s_add_u32 s98, s98, {kern*65536}")
    for i in range(8):
        a.I(f"v_mov_b32 v{240+i}, s{80+2*i}")
    a.I("v_mov_b32 v248, 0")
    a.I("s_mov_b64 exec, 1")
    a.I(f"buffer_store_dwordx4 v[240:243], v248, {S(d,4)}, s98 offen")
    a.I(f"buffer_store_dwordx4 v[244:247], v248, {S(d,4)}, s98 offen offset:16")
    a.I("s_mov_b64 exec, -1")


def interleave(a, main, fill):
    n = len(main)
    k = 0
    for i, m in enumerate(main):
        a.I(m)
        upto = (len(fill) * (i + 1) + n - 1) // n if i < n - 1 else len(fill)
        while k < upto:
            f = fill[k]
            if callable(f):
                f()
            else:
                a.I(f)
            k += 1


def srd(a, d, lo, hi, size, add=None):
    if add is None:
        a.I(f"s_mov_b32 s{d}, s{lo}")
        a.I(f"s_and_b32 s{d+1}, s{hi}, 0xffff")
    else:
        a.I(f"s_add_u32 s{d}, s{lo}, {add}")
        a.I(f"s_addc_u32 s{d+1}, s{hi}, 0")
        a.I(f"s_and_b32 s{d+1}, s{d+1}, 0xffff")
    a.I(f"s_mov_b32 s{d+2}, {size}")
    a.I(f"s_mov_b32 s{d+3}, 0x20000")


def code_prefetch(a, vtmp, vjunk, nbytes, nthreads, vtid):
    if not OPT["prefetch_code"]:
        return 0
    a.I("s_getpc_b64 s[96:97]")
    a.I(f"v_lshlrev_b32 v{vtmp}, 4, v{vtid}")
    n = (nbytes + nthreads * 16 - 1) // (nthreads * 16)
    for i in range(n):
        a.I(f"global_load_dwordx4 {V(vjunk,4)}, v{vtmp}, s[96:97]")
        if i < n - 1:
            a.I(f"v_add_u32 v{vtmp}, {nthreads*16}, v{vtmp}")
    return n


def softmax_pm(D, T, sL):
    t0, t1, t2, t3 = T, T + 1, T + 2, T + 3
    L = []
    A = L.append
    A(f"v_max3_f32 v{t0}, v{D}, v{D+1}, v{D+2}")
    A(f"v_max3_f32 v{t1}, v{D+8}, v{D+9}, v{D+10}")
    A(f"v_max3_f32 v{t2}, v{D+3}, v{D+4}, v{D+5}")
    A(f"v_max3_f32 v{t3}, v{D+11}, v{D+12}, v{D+13}")
    A(f"v_max3_f32 v{t0}, v{D+6}, v{D+7}, v{t0}")
    A(f"v_max3_f32 v{t1}, v{D+14}, v{D+15}, v{t1}")
    A(f"v_max_f32 v{t0}, v{t0}, v{t2}")
    A(f"v_max_f32 v{t1}, v{t1}, v{t3}")
    A(f"v_permlane32_swap_b32 v{t0}, v{t1}")
    A(f"v_max_f32 v{t0}, v{t0}, v{t1}")
    A(f"v_mul_f32 v{t0}, s{sL}, v{t0}")
    A(f"v_mov_b32 v{t1}, v{t0}")
    A(f"v_permlane32_swap_b32 v{t0}, v{t1}")
    for i in range(16):
        A(f"v_fma_f32 v{D+i}, v{D+i}, s{sL}, -v{t0 if i < 8 else t1}")
    for i in range(16):
        A(f"v_exp_f32 v{D+i}, v{D+i}")
    A(f"v_add_f32 v{t0}, v{D}, v{D+1}")
    A(f"v_add_f32 v{t1}, v{D+8}, v{D+9}")
    A(f"v_add_f32 v{t2}, v{D+2}, v{D+3}")
    A(f"v_add_f32 v{t3}, v{D+10}, v{D+11}")
    for i in (4, 6):
        A(f"v_add_f32 v{t0}, v{t0}, v{D+i}")
        A(f"v_add_f32 v{t1}, v{t1}, v{D+8+i}")
        A(f"v_add_f32 v{t2}, v{t2}, v{D+i+1}")
        A(f"v_add_f32 v{t3}, v{t3}, v{D+8+i+1}")
    A(f"v_add_f32 v{t0}, v{t0}, v{t2}")
    A(f"v_add_f32 v{t1}, v{t1}, v{t3}")
    A(f"v_permlane32_swap_b32 v{t0}, v{t1}")
    A(f"v_add_f32 v{t0}, v{t0}, v{t1}")
    A(f"v_rcp_f32 v{t0}, v{t0}")
    A(f"v_mov_b32 v{t1}, v{t0}")
    A(f"v_permlane32_swap_b32 v{t0}, v{t1}")
    for i in range(16):
        A(f"v_mul_f32 v{D+i}, v{D+i}, v{t0 if i < 8 else t1}")
    return L


def zipl(*lists):
    out = []
    n = max(len(l) for l in lists)
    for i in range(n):
        for l in lists:
            if i < len(l):
                out.append(l[i])
    return out


def emit(a, L):
    for f in L:
        if callable(f):
            f()
        else:
            a.I(f)


def pack8l(dst, src):
    return [f"v_cvt_pk_bf16_f32 v{dst+i}, v{src+2*i}, v{src+2*i+1}" for i in range(4)]


def pack8(a, dst, src):
    for i in range(4):
        a.I(f"v_cvt_pk_bf16_f32 v{dst+i}, v{src+2*i}, v{src+2*i+1}")


sX_, sWQKV, sWPHI, sW1, sW3, sWS = 4, 6, 8, 12, 14, 16
dX, dWA, dWB, dWE, dO0, dO1 = 20, 24, 28, 32, 36, 44
sWV, sXCD, sJ, sROWQ, sCOLH = 48, 49, 50, 51, 52
sRB, sG, sRH, sCQ, sROT = 53, 54, 55, 56, 57
sXO, sWO, sDST, sT, sC, sRSL, sDSL, sDL, sONES = 58, 59, 60, 61, 62, 63, 64, 65, 66
sEOFF, sELDS, sT2, sT3, sL2E, sRT0, sRT1 = 67, 68, 69, 70, 71, 72, 73
sMASK = 74
sSLOT, sM2 = 76, 77


sCH, sWB, sHM = 78, 79, 18
M16 = "v_mfma_f32_16x16x32_bf16"


def k1_type(a, kind):
    ffn = kind == "ffn"
    P = f"k1_{kind}"
    XI = 4 if kind == "kv" else 2
    SLOT = 53376 if ffn else 49152
    WOFF = 32768 if kind == "kv" else 16384
    UOFF = 18432 + 128
    RSW = RS1 if ffn else RSQ
    r = Regs(2, 256, "v")
    vL = 0
    vTID = 1
    acc = [r.alloc(16, 4) for _ in range(5 if ffn else 4)]
    setbase = r.mark()
    fx = []; fw = []
    for _ in range(4):
        fx.append([r.alloc(4, 4) for _ in range(2)])
        fw.append([r.alloc(4, 4) for _ in range(3 if ffn else 2)])
    cs = [r.alloc(4, 4) for _ in range(3 if ffn else 2)]
    sel = r.alloc(4, 4)
    junk = r.alloc(4, 4)
    adr = [[r.alloc(4, 4) for _ in range(4 if ffn else 2)] for _ in range(2)]
    st = [[r.alloc() for _ in range(4)] for _ in range(2)]
    vDX = r.alloc(); vDW = r.alloc(); vDE = r.alloc()
    t = [r.alloc() for _ in range(8)]
    u = [r.alloc() for _ in range(4)]
    vHM = r.alloc()
    kvr = [r.alloc() for _ in range(5)] + [r.alloc(4, 4) for _ in range(2)] if kind == "kv" else None
    if ffn:
        Mop = [adr[1][0], adr[1][1]]
        ex = [adr[1][2] + i for i in range(4)] + [adr[1][3] + i for i in range(4)]
    else:
        Mop = [r.alloc(4, 4) for _ in range(2)]
        ex = [r.alloc() for _ in range(8)]
    CR = cs

    a.L(P)
    code_prefetch(a, t[0], junk, 32768 if (ffn or OPT['stagger']) else 16384, 512, vTID)
    if ffn:
        a.I(f"s_and_b32 s{sT}, s{sJ}, 3")
        a.I(f"s_lshl_b32 s{sRB}, s{sROWQ}, 2")
        a.I(f"s_add_u32 s{sRB}, s{sRB}, s{sT}")
        a.I(f"s_lshr_b32 s{sT}, s{sJ}, 2")
        a.I(f"s_mul_i32 s{sG}, s{sCOLH}, 5")
        a.I(f"s_add_u32 s{sG}, s{sG}, s{sT}")
        a.I(f"s_lshl_b32 s{sT2}, s{sRB}, 17")
        a.I(f"s_mul_i32 s{sWO}, s{sG}, 288")
    elif kind == "kv":
        a.I(f"s_sub_u32 s{sT}, s{sJ}, 20")
        a.I(f"s_and_b32 s{sT2}, s{sT}, 1")
        a.I(f"s_lshl_b32 s{sRB}, s{sROWQ}, 1")
        a.I(f"s_add_u32 s{sRB}, s{sRB}, s{sT2}")
        a.I(f"s_lshr_b32 s{sT}, s{sT}, 1")
        a.I(f"s_lshl_b32 s{sG}, s{sCOLH}, 2")
        a.I(f"s_add_u32 s{sG}, s{sG}, s{sT}")
        a.I(f"s_lshl_b32 s{sT2}, s{sRB}, 18")
        a.I(f"s_lshl_b32 s{sWO}, s{sG}, 7")
        a.I(f"s_add_u32 s{sWO}, s{sWO}, 1024")
    else:
        a.I(f"s_sub_u32 s{sT}, s{sJ}, 28")
        a.I(f"s_lshl_b32 s{sRB}, s{sROWQ}, 2")
        a.I(f"s_add_u32 s{sRB}, s{sRB}, s{sT}")
        a.I(f"s_mov_b32 s{sG}, s{sCOLH}")
        a.I(f"s_lshl_b32 s{sT2}, s{sRB}, 17")
        a.I(f"s_lshl_b32 s{sWO}, s{sCOLH}, 9")
    a.I(f"s_and_b32 s{sRH}, s{sWV}, 1")
    a.I(f"v_lshrrev_b32 v{t[0]}, 3, v{vL}")
    a.I(f"v_and_b32 v{t[1]}, 7, v{vL}")
    a.I(f"s_lshl_b32 s{sT}, s{sWV}, 3")
    a.I(f"v_add_u32 v{t[2]}, s{sT}, v{t[0]}")
    a.I(f"v_bfe_u32 v{t[3]}, v{t[2]}, 1, 3")
    a.I(f"v_xor_b32 v{t[3]}, v{t[3]}, v{t[1]}")
    a.I(f"v_lshlrev_b32 v{t[3]}, 4, v{t[3]}")
    a.I(f"v_lshl_add_u32 v{vDX}, v{t[2]}, 10, v{t[3]}")
    if ffn:
        a.I(f"s_mov_b32 s{sT3}, {RS1}")
        a.I(f"s_mov_b32 s{sT}, 3641")
        for (dst, pat) in ((vDW, None), (vDE, 8)):
            if pat is None:
                src = vTID
            else:
                a.I(f"v_add_u32 v{t[4]}, 512, v{vL}")
                src = t[4]
            a.I(f"v_mul_u32_u24 v{t[5]}, s{sT}, v{src}")
            a.I(f"v_lshrrev_b32 v{t[5]}, 16, v{t[5]}")
            a.I(f"v_mul_u32_u24 v{t[6]}, 18, v{t[5]}")
            a.I(f"v_sub_u32 v{t[6]}, v{src}, v{t[6]}")
            a.I(f"v_lshlrev_b32 v{t[6]}, 4, v{t[6]}")
            a.I(f"v_mad_u32_u24 v{dst}, v{t[5]}, s{sT3}, v{t[6]}")
        a.I(f"v_add_u32 v{vDW}, s{sWO}, v{vDW}")
        a.I(f"s_mul_i32 s{sT}, s{sRH}, {32*RS1}")
        a.I(f"s_add_u32 s{sT}, s{sT}, s{sWO}")
        a.I(f"v_add_u32 v{vDE}, s{sT}, v{vDE}")
    else:
        a.I(f"v_and_b32 v{t[3]}, 2, v{t[0]}")
        a.I(f"v_lshlrev_b32 v{t[3]}, 1, v{t[3]}")
        a.I(f"v_xor_b32 v{t[3]}, v{t[3]}, v{t[1]}")
        a.I(f"v_lshlrev_b32 v{t[3]}, 4, v{t[3]}")
        a.I(f"s_mov_b32 s{sT3}, {RSQ}")
        a.I(f"v_mad_u32_u24 v{vDW}, v{t[2]}, s{sT3}, v{t[3]}")
        a.I(f"v_add_u32 v{vDW}, s{sWO}, v{vDW}")
    a.I(f"s_lshl_b32 s{sDST}, s{sWV}, 10")
    if ffn:
        a.I(f"s_mul_i32 s{sT}, s{sRH}, 9216")
        a.I(f"s_bitcmp1_b32 s{sWV}, 1")
        a.I(f"s_cselect_b32 s{sELDS}, {UOFF}, 0")
        a.I(f"s_add_u32 s{sELDS}, s{sELDS}, {WOFF + 8192}")
        a.I(f"s_add_u32 s{sELDS}, s{sELDS}, s{sT}")
    a.I("s_waitcnt lgkmcnt(0)")
    srd(a, dX, sX_, sX_ + 1, (256 if kind == "kv" else 128) * 1024, add=f"s{sT2}")
    if ffn:
        srd(a, dWA, sW1, sW1 + 1, 512 * RS1)
        srd(a, dWB, sW3, sW3 + 1, 512 * RS1)
        a.I(f"s_bitcmp1_b32 s{sWV}, 1")
        a.I(f"s_cselect_b32 s{dWE}, s{dWB}, s{dWA}")
        a.I(f"s_cselect_b32 s{dWE+1}, s{dWB+1}, s{dWA+1}")
        a.I(f"s_mov_b32 s{dWE+2}, {512*RS1}")
        a.I(f"s_mov_b32 s{dWE+3}, 0x20000")
    else:
        srd(a, dWA, sWQKV, sWQKV + 1, 512 * RSQ)

    vm = []

    def vmwait(c):
        idx = max([i for i, tg in enumerate(vm) if tg == c], default=-1)
        n = len(vm) - 1 - idx
        del vm[:idx + 1]
        return n

    def dma_list(cls, c):
        so = (c % 3) * SLOT
        L = []
        for i in range(XI):
            L.append((sDST, so + 8192 * i, c * 128 + 65536 * i, f"buffer_load_dwordx4 v{vDX}, {S(dX,4)}, %s offen lds"))
        if ffn:
            for (d, off) in ((dWA, 0), (dWB, UOFF)):
                for hi in range(2):
                    L.append((sDST, so + WOFF + off + 9216 * hi, c * 64 * RS1 + 32 * RS1 * hi, f"buffer_load_dwordx4 v{vDW}, {S(d,4)}, %s offen lds"))
            if cls == 1:
                L.append((sELDS, so, c * 64 * RS1, f"buffer_load_dwordx4 v{vDE}, {S(dWE,4)}, %s offen lds"))
        else:
            for rg in range(4 if kind == "q" else 2):
                g = 128 * rg if kind == "q" else 1024 * rg
                L.append((sDST, so + WOFF + 8192 * rg, c * 64 * RSQ + g, f"buffer_load_dwordx4 v{vDW}, {S(dWA,4)}, %s offen lds"))
        out = []
        for (sb, m0c, goff, ins) in L:
            def f(sb=sb, m0c=m0c, goff=goff, ins=ins):
                a.I(f"s_add_u32 m0, s{sb}, {m0c}")
                a.I(f"s_mov_b32 s{sT}, {goff}")
                a.I(ins % f"s{sT}")
                vm.append(c)
            out.append(f)
        return [] if OPT["nodma"] and c >= 2 else out

    classes = (0, 1) if (ffn or OPT["stagger"]) else (0,)
    if len(classes) == 2:
        a.I(f"s_cmp_ge_u32 s{sWV}, 4")
        a.I(f"s_cbranch_scc1 {P}_c1")
    for cls in classes:
        C = f"{P}_c{cls}"
        a.L(C)
        del vm[:]
        extra = ffn and cls == 0
        NT = 3 if extra else 2
        emit(a, dma_list(cls, 0) + dma_list(cls, 1))
        if kind == "kv":
            srd(a, dWE, sWPHI, sWPHI + 1, 32 * 512)
            a.I(f"s_lshl_b32 s{sT}, s{sG}, 11")
            a.I(f"s_lshl_b32 s{sT2}, s{sRH}, 10")
            a.I(f"s_add_u32 s{sT}, s{sT}, s{sT2}")
            a.I(f"v_lshlrev_b32 v{vDE}, 4, v{vL}")
            a.I(f"s_add_u32 m0, s{sDST}, {3*SLOT}")
            a.I(f"buffer_load_dwordx4 v{vDE}, {S(dWE,4)}, s{sT} offen lds")
            vm.append("phi")
        sentinel_fill(a, t[0], fx[3][0], vTID, dO0)
        vm.append("fill")
        a.I(f"s_lshr_b32 s{sCQ}, s{sWV}, 1")
        a.I(f"s_lshl_b32 s{sROT}, s{sRH}, 1")
        a.I(f"s_add_u32 s{sROT}, s{sROT}, s{sCQ}")
        a.I(f"s_and_b32 s{sROT}, s{sROT}, 3")
        a.I(f"v_and_b32 v{t[0]}, 31, v{vL}")
        a.I(f"v_lshrrev_b32 v{t[1]}, 5, v{vL}")
        a.I(f"v_bfe_u32 v{t[2]}, v{vL}, 1, 3")
        if kind == "kv":
            a.I(f"s_lshl_b32 s{sRT0}, s{sCQ}, 1")
            a.I(f"s_add_u32 s{sRT1}, s{sRT0}, 1")
        elif kind == "q":
            a.I(f"s_lshl_b32 s{sRT0}, s{sRH}, 1")
            a.I(f"s_add_u32 s{sRT1}, s{sRT0}, 1")
        else:
            a.I(f"s_and_b32 s{sT}, s{sCQ}, 1")
            a.I(f"s_lshl_b32 s{sRT0}, s{sRH}, 1")
            a.I(f"s_add_u32 s{sRT0}, s{sRT0}, s{sT}")
            a.I(f"s_xor_b32 s{sRT1}, s{sRT0}, 1")
        a.I(f"v_bfe_u32 v{t[4]}, v{vL}, 2, 2")
        a.I(f"v_lshl_add_u32 v{t[4]}, v{t[1]}, 3, v{t[4]}")
        a.I(f"v_and_b32 v{t[5]}, 3, v{vL}")
        a.I(f"v_lshlrev_b32 v{t[5]}, 3, v{t[5]}")
        a.I(f"v_bfe_u32 v{t[6]}, v{vL}, 4, 1")
        if ffn:
            a.I(f"s_mov_b32 s{sT3}, {UOFF}")
            a.I(f"v_mad_u32_u24 v{t[5]}, v{t[6]}, s{sT3}, v{t[5]}")
            a.I(f"v_mul_u32_u24 v{t[4]}, 288, v{t[4]}")
            a.I(f"v_add_u32 v{t[5]}, v{t[5]}, v{t[4]}")
            PITCH = 288
        else:
            if kind == "kv":
                a.I(f"s_lshl_b32 s{sT}, s{sRH}, 1")
            else:
                a.I(f"s_and_b32 s{sT}, s{sCQ}, 1")
                a.I(f"s_lshl_b32 s{sT}, s{sT}, 1")
            a.I(f"v_add_u32 v{t[6]}, s{sT}, v{t[6]}")
            a.I(f"v_and_b32 v{t[7]}, 2, v{t[4]}")
            a.I(f"v_xor_b32 v{t[6]}, v{t[6]}, v{t[7]}")
            a.I(f"v_lshl_add_u32 v{t[5]}, v{t[6]}, 5, v{t[5]}")
            a.I(f"v_lshl_add_u32 v{t[5]}, v{t[4]}, 7, v{t[5]}")
            PITCH = 128
        if ffn:
            a.I(f"s_lshl_b32 s{sT3}, s{sCQ}, 6")
            a.I(f"s_add_u32 s{sT3}, s{sT3}, {WOFF}")
        elif kind == "q":
            a.I(f"s_lshr_b32 s{sT3}, s{sCQ}, 1")
            a.I(f"s_lshl_b32 s{sT3}, s{sT3}, 14")
            a.I(f"s_add_u32 s{sT3}, s{sT3}, {WOFF}")
        else:
            a.I(f"s_mov_b32 s{sT3}, {WOFF}")
        for j in range(4):
            a.I(f"s_add_u32 s{sT}, s{sROT}, {j}")
            a.I(f"s_and_b32 s{sT}, s{sT}, 3")
            a.I(f"s_lshl_b32 s{sT2}, s{sT}, 1")
            a.I(f"v_add_u32 v{t[3]}, s{sT2}, v{t[1]}")
            a.I(f"v_xor_b32 v{t[3]}, v{t[3]}, v{t[2]}")
            a.I(f"v_lshlrev_b32 v{t[3]}, 4, v{t[3]}")
            a.I(f"v_lshl_add_u32 v{t[3]}, v{t[0]}, 7, v{t[3]}")
            a.I(f"s_lshl_b32 s{sT2}, s{sRT0}, 12")
            a.I(f"v_add_u32 v{adr[0][0]+j}, s{sT2}, v{t[3]}")
            if ffn:
                a.I(f"s_lshl_b32 s{sT2}, s{sRT1}, 12")
                a.I(f"v_add_u32 v{adr[0][2]+j}, s{sT2}, v{t[3]}")
            a.I(f"s_mul_i32 s{sT}, s{sT}, {16*PITCH}")
            a.I(f"s_add_u32 s{sT2}, s{sT}, s{sT3}")
            a.I(f"v_add_u32 v{adr[0][1]+j}, s{sT2}, v{t[5]}")
            if extra:
                a.I(f"s_add_u32 s{sT2}, s{sT}, {WOFF + 256}")
                a.I(f"v_add_u32 v{adr[0][3]+j}, s{sT2}, v{t[5]}")
        for k in range(len(adr[0]) if extra or not ffn else 3):
            for j in range(4):
                a.I(f"v_add_u32 v{adr[1][k]+j}, {2*SLOT}, v{adr[0][k]+j}")
        if kind == "kv":
            kv_addr(a, kvr, t, vL, SLOT)
        a.I(f"v_lshrrev_b32 v{t[0]}, 4, v{vL}")
        a.I(f"v_xor_b32 v{t[0]}, v{t[0]}, v{vL}")
        a.I(f"v_and_b32 v{t[0]}, 1, v{t[0]}")
        a.I(f"v_add_u32 v{t[0]}, -1, v{t[0]}")
        for i in range(4):
            a.I(f"v_and_b32 v{sel+i}, 0x3f803f80, v{t[0]}")
        for x in st[0] + st[1]:
            a.I(f"v_mov_b32 v{x}, 0")
        a.I(f"v_mov_b32 v{vHM}, 0xffff0000")
        a.I(f"s_mov_b32 s{sMASK}, -1")
        a.I(f"s_mov_b32 s{sMASK+1}, 0")
        a.I(f"s_mov_b32 s{sL2E}, {LOG2E}")
        T1 = 32 if ffn else 8192
        H2 = 4 * PITCH
        NR = 8 if extra else 6

        def reads(c, j):
            if OPT["nolds"]:
                return []
            b = adr[1 if c % 3 == 2 else 0]
            o = SLOT if c % 3 == 1 else 0
            L = []
            L.append(f"ds_read_b128 {V(fx[j][0],4)}, v{b[0]+j} offset:{o}")
            L.append(f"ds_read_b64_tr_b16 {V(fw[j][0],2)}, v{b[1]+j} offset:{o}")
            L.append(f"ds_read_b64_tr_b16 {V(fw[j][0]+2,2)}, v{b[1]+j} offset:{o+H2}")
            L.append(f"ds_read_b64_tr_b16 {V(fw[j][1],2)}, v{b[1]+j} offset:{o+T1}")
            L.append(f"ds_read_b64_tr_b16 {V(fw[j][1]+2,2)}, v{b[1]+j} offset:{o+T1+H2}")
            if ffn:
                L.append(f"ds_read_b128 {V(fx[j][1],4)}, v{b[2]+j} offset:{o}")
            else:
                L.append(f"ds_read_b128 {V(fx[j][1],4)}, v{b[0]+j} offset:{o+4096}")
            if extra:
                L.append(f"ds_read_b64_tr_b16 {V(fw[j][2],2)}, v{b[3]+j} offset:{o}")
                L.append(f"ds_read_b64_tr_b16 {V(fw[j][2]+2,2)}, v{b[3]+j} offset:{o+H2}")
            return L

        tiles = [(0, 0), (0, 1), (1, 0), (1, 1)] + ([(0, 2)] if extra else [])

        def m1(j, n, first=False):
            rt, tl = tiles[n]
            return f"{MFMA} {V(acc[n],16)}, {V(fw[j][tl],4)}, {V(fx[j][rt],4)}, {'0' if first else V(acc[n],16)}"

        def cs16(c, j):
            if OPT["nodot"]:
                return []
            if kind == "kv":
                tls = (0, 1) if j == 0 else ()
            else:
                tls = {0: (0, 1, 2) if extra else (0, 1), 1: (0, 1)}.get(j, ())
            return [f"{M16} {V(cs[tl],4)}, {V(fw[j][tl],4)}, {V(sel,4)}, {'0' if (c == 0 and j == 0) else V(cs[tl],4)}" for tl in tls]

        def mf(c, j, with_cs=True):
            if OPT["nomfma"]:
                return ["s_nop 0"] * 4
            L = [m1(j, n, first=(c == 0 and j == 0)) for n in range(len(tiles))]
            if with_cs:
                for i, x in enumerate(cs16(c, j)):
                    L.insert(2 * i + 1, x)
            return L

        def xstats(j):
            L = []
            for i in range(4):
                for rt in range(2):
                    lo, hi = u[2 * rt], u[2 * rt + 1]
                    L.append(f"v_lshlrev_b32 v{lo}, 16, v{fx[j][rt]+i}")
                    L.append(f"v_and_b32 v{hi}, v{vHM}, v{fx[j][rt]+i}")
                for rt in range(2):
                    lo, hi = u[2 * rt], u[2 * rt + 1]
                    L.append(f"v_add_f32 v{st[rt][0]}, v{st[rt][0]}, v{lo}")
                    L.append(f"v_add_f32 v{st[rt][1]}, v{st[rt][1]}, v{hi}")
                    L.append(f"v_fmac_f32 v{st[rt][2]}, v{lo}, v{lo}")
                    L.append(f"v_fmac_f32 v{st[rt][3]}, v{hi}, v{hi}")
            return [] if OPT["nodot"] else L

        SC = 131072 if kind == "kv" else 2 * SLOT
        CS = SC + (8192 if kind == "kv" else 4096)
        slot_x = sRH if kind == "kv" else sCQ
        slot_c = sCQ if kind == "kv" else sRH
        TD = 1 if ffn else 2
        sTI = sHM + 1
        sO = [sXO, sWO, sWB, sCH]

        def exaddr():
            a.I(f"v_and_b32 v{t[0]}, 31, v{vL}")
            a.I(f"v_lshrrev_b32 v{t[1]}, 5, v{vL}")
            a.I(f"v_lshlrev_b32 v{t[2]}, 5, v{t[0]}")
            a.I(f"v_lshlrev_b32 v{t[3]}, 2, v{t[1]}")
            a.I(f"s_lshl_b32 s{sT}, s{slot_x}, 3")
            for rt, srt in ((0, sRT0), (1, sRT1)):
                a.I(f"s_lshl_b32 s{sT2}, s{srt}, 10")
                a.I(f"s_add_u32 s{sT2}, s{sT2}, {SC}")
                a.I(f"v_add_u32 v{ex[rt]}, s{sT2}, v{t[2]}")
                a.I(f"v_add3_u32 v{ex[2+rt]}, v{ex[rt]}, v{t[3]}, s{sT}")
            if ffn:
                a.I(f"s_lshl_b32 s{sTI}, s{sCQ}, 1")
            elif kind == "q":
                a.I(f"s_lshr_b32 s{sTI}, s{sCQ}, 1")
                a.I(f"s_lshl_b32 s{sTI}, s{sTI}, 2")
                a.I(f"s_and_b32 s{sT2}, s{sCQ}, 1")
                a.I(f"s_add_u32 s{sTI}, s{sTI}, s{sT2}")
            else:
                a.I(f"s_mov_b32 s{sTI}, s{sRH}")
            a.I(f"s_lshl_b32 s{sT2}, s{sTI}, 9")
            a.I(f"s_add_u32 s{sT2}, s{sT2}, {CS}")
            a.I(f"v_lshlrev_b32 v{t[4]}, 2, v{t[0]}")
            a.I(f"v_add_u32 v{ex[4]}, s{sT2}, v{t[4]}")
            a.I(f"v_and_b32 v{t[5]}, 1, v{vL}")
            a.I(f"v_lshlrev_b32 v{t[5]}, 6, v{t[5]}")
            a.I(f"v_lshrrev_b32 v{t[6]}, 4, v{vL}")
            a.I(f"v_lshl_add_u32 v{t[5]}, v{t[6]}, 4, v{t[5]}")
            a.I(f"s_lshl_b32 s{sT}, s{slot_c}, 7")
            a.I(f"s_add_u32 s{sT2}, s{sT2}, s{sT}")
            a.I(f"v_add_u32 v{ex[5]}, s{sT2}, v{t[5]}")
            if extra:
                a.I(f"v_add_u32 v{ex[6]}, {CS + 8*512}, v{t[4]}")
                a.I(f"s_lshl_b32 s{sT2}, s{sROT}, 7")
                a.I(f"s_add_u32 s{sT2}, s{sT2}, {CS + 8*512}")
                a.I(f"v_add_u32 v{ex[7]}, s{sT2}, v{t[5]}")

        def outsetup():
            if ffn:
                for rt, srt, d in ((0, sRT0, dO0), (1, sRT1, dO1)):
                    a.I(f"s_lshl_b32 s{sT}, s{sRB}, 2")
                    a.I(f"s_add_u32 s{sT}, s{sT}, s{srt}")
                    a.I(f"s_mul_i32 s{sT}, s{sT}, {86*1024}")
                    srd(a, d, sWS, sWS + 1, 86 * 1024, add=f"s{sT}")
                a.I(f"s_mul_i32 s{sO[1]}, s{sG}, {9*1024}")
                a.I(f"s_lshl_b32 s{sO[0]}, s{sCQ}, 11")
                a.I(f"s_add_u32 s{sO[0]}, s{sO[0]}, s{sO[1]}")
                a.I(f"s_add_u32 s{sO[1]}, s{sO[1]}, {8*1024}")
            elif kind == "q":
                srd(a, dO0, sWS, sWS + 1, 64 * 32 * 1024, add=QB)
                a.I(f"s_lshl_b32 s{sT3}, s{sTI}, 1")
                a.I(f"s_lshl_b32 s{sT}, s{sCOLH}, 4")
                a.I(f"s_add_u32 s{sT3}, s{sT3}, s{sT}")
                for srt, so in ((sRT0, sO[0]), (sRT1, sO[2])):
                    a.I(f"s_lshl_b32 s{sT}, s{sRB}, 2")
                    a.I(f"s_add_u32 s{sT}, s{sT}, s{srt}")
                    a.I(f"s_lshl_b32 s{sT}, s{sT}, 5")
                    a.I(f"s_add_u32 s{sT}, s{sT}, s{sT3}")
                    a.I(f"s_lshl_b32 s{so}, s{sT}, 10")
                a.I(f"s_add_u32 s{sO[1]}, s{sO[0]}, 4096")
                a.I(f"s_add_u32 s{sO[3]}, s{sO[2]}, 4096")
            else:
                srd(a, dO0, sWS, sWS + 1, 8 * 32 * 4096, add=KVB)
                a.I(f"s_lshl_b32 s{sT}, s{sRB}, 5")
                a.I(f"s_lshl_b32 s{sT3}, s{sG}, 2")
                a.I(f"s_add_u32 s{sT}, s{sT}, s{sT3}")
                a.I(f"s_lshl_b32 s{sT3}, s{sRH}, 1")
                a.I(f"s_add_u32 s{sT}, s{sT}, s{sT3}")
                a.I(f"s_lshl_b32 s{sT}, s{sT}, 12")
                a.I(f"s_lshl_b32 s{sT2}, s{sCQ}, 10")
                a.I(f"s_add_u32 s{sO[0]}, s{sT}, s{sT2}")
                a.I(f"s_add_u32 s{sO[1]}, s{sO[0]}, 4096")

        def capture(fn):
            n0 = len(a.items)
            fn()
            L = [it.text for it in a.items[n0:]]
            del a.items[n0:]
            return L

        if not ffn:
            exaddr()
        late_setup = OPT["stamp"]
        if not late_setup:
            outsetup()
        stamp(a, 1)
        carry = []
        late = OPT["stagger"] and cls == 1
        for c in range(7):
            a.I(f"s_waitcnt vmcnt({vmwait(c)}) lgkmcnt(0)")
            if c == 0:
                stamp(a, 2)
            a.I("s_barrier")
            dm = dma_list(cls, c + 2) if c + 2 < 8 else []
            x0 = xstats(0)
            if kind == "kv":
                x1 = xstats(1)
                pA, pB, pC, pD = carry, x0[:12], x0[12:36], x0[36:] + x1[:16]
                carry = x1[16:]
                if c == 6:
                    pD = x0[36:] + x1; carry = []
            else:
                pA, pB, pC, pD = [], x0[:12], x0[12:32], x0[32:]
            xtraB = []
            if c == OPT["pfat"]:
                L = capture(lambda: w2_prefetch(a, t[1], junk, vTID))
                npf = sum(1 for x in L if x.startswith("buffer"))
                xtraB = L + [lambda npf=npf: vm.extend(["pf"] * npf)]
            if c == 6:
                xtraB = xtraB + (capture(exaddr) if ffn else []) + (capture(outsetup) if late_setup else [])
            dA, dC = ([], dm) if (late and c) else (dm, [])
            if c == 0:
                emit(a, reads(c, 0) + dm + reads(c, 1))
                a.I(f"s_waitcnt lgkmcnt({NR})")
                emit(a, pB)
            else:
                interleave(a, mf(c - 1, 2), zipl(reads(c, 0), pA, dA))
                g = mf(c - 1, 3)
                h = (len(g) + 1) // 2
                interleave(a, g[:h], reads(c, 1) + xtraB)
                a.I(f"s_waitcnt lgkmcnt({NR})")
                interleave(a, g[h:], pB)
            interleave(a, mf(c, 0), zipl(reads(c, 2), pC, dC))
            a.I(f"s_waitcnt lgkmcnt({NR})")
            interleave(a, mf(c, 1), reads(c, 3) + pD)
        stamp(a, 3)
        a.I(f"s_waitcnt vmcnt({vmwait(7)}) lgkmcnt(0)")
        a.I("s_barrier")
        pre = reads(7, 0) + reads(7, 1)
        if kind == "kv":
            WP = kvr[5:7]
            for hd in range(2):
                pre.append(f"ds_read_b64_tr_b16 {V(WP[hd],2)}, v{kvr[3]} offset:{512*hd}")
                pre.append(f"ds_read_b64_tr_b16 {V(WP[hd]+2,2)}, v{kvr[3]} offset:{512*hd+256}")
        g = mf(6, 2)
        a.I(g[0])
        emit(a, pre)
        emit(a, g[1:])
        a.I("s_waitcnt lgkmcnt(0)")
        g = mf(6, 3)
        cl = cs16(7, 0) + cs16(7, 1)
        g = cl + g if not OPT["nomfma"] else g
        interleave(a, g, zipl(reads(7, 2), xstats(0) + (xstats(1) if kind == "kv" else [])))
        emit(a, reads(7, 3))
        f3 = []
        for rt in range(2):
            f3.append(f"v_add_f32 v{st[rt][0]}, v{st[rt][0]}, v{st[rt][1]}")
            f3.append(f"v_add_f32 v{st[rt][2]}, v{st[rt][2]}, v{st[rt][3]}")
        for tl in range(2):
            f3.append(f"ds_write_b128 v{ex[5]}, {V(cs[tl],4)} offset:{512*TD*tl}")
        if extra:
            f3.append(f"ds_write_b128 v{ex[7]}, {V(cs[2],4)}")
        for rt in range(2):
            f3.append(f"v_permlane32_swap_b32 v{st[rt][0]}, v{st[rt][2]}")
        for rt in range(2):
            f3.append(f"v_add_f32 v{st[rt][0]}, v{st[rt][0]}, v{st[rt][2]}")
        for rt in range(2):
            f3.append(f"ds_write_b32 v{ex[2+rt]}, v{st[rt][0]}")
        g0 = mf(7, 0, with_cs=False)
        interleave(a, g0[:2], f3)
        emit(a, g0[2:])
        a.I("s_waitcnt lgkmcnt(0)")
        a.I("s_barrier")
        R = [fx[0][0], fx[0][1], fw[0][0], fw[0][1]]
        for rt in range(2):
            a.I(f"ds_read_b128 {V(R[2*rt],4)}, v{ex[rt]}")
            if kind != "kv":
                a.I(f"ds_read_b128 {V(R[2*rt+1],4)}, v{ex[rt]} offset:16")
        for tl in range(NT):
            ns = 4 if (kind == "kv" or tl == 2) else 2
            for sl in range(ns):
                if tl < 2:
                    a.I(f"ds_read_b32 v{CR[tl]+sl}, v{ex[4]} offset:{512*TD*tl + 128*sl}")
                else:
                    a.I(f"ds_read_b32 v{CR[tl]+sl}, v{ex[6]} offset:{128*sl}")
        vO = t[0]
        f4 = [f"v_lshlrev_b32 v{vO}, 4, v{vL}"]
        if kind == "kv":
            for i in range(4):
                f4.append(f"v_mov_b32 v{sel+i}, 0x3f803f80")
            for n in range(4):
                f4.append(f"ds_write_b128 v{kvr[4]}, {V(sel,4)} offset:{n*KV_UNIT+96}")
        interleave(a, mf(7, 1, with_cs=False), f4)
        a.I("s_waitcnt lgkmcnt(0)")
        rstd = [st[0][0], st[1][0]]
        ir2 = [st[0][1], st[1][1]]
        rl = [st[0][2], st[1][2]]
        ml = []
        for rt in range(2):
            A_, B_ = R[2 * rt], R[2 * rt + 1]
            M = Mop[rt]
            L = []
            L.append(f"v_add_f32 v{A_}, v{A_}, v{A_+2}")
            L.append(f"v_add_f32 v{A_+1}, v{A_+1}, v{A_+3}")
            if kind != "kv":
                L.append(f"v_add_f32 v{B_}, v{B_}, v{B_+2}")
                L.append(f"v_add_f32 v{B_+1}, v{B_+1}, v{B_+3}")
                L.append(f"v_add_f32 v{A_}, v{A_}, v{B_}")
                L.append(f"v_add_f32 v{A_+1}, v{A_+1}, v{B_+1}")
            L.append(f"v_mul_f32 v{A_}, 0xbb000000, v{A_}")
            L.append(f"v_mul_f32 v{A_+1}, 0x3b000000, v{A_+1}")
            L.append(f"v_cvt_pk_bf16_f32 v{M}, v{A_}, v{A_}")
            L.append(f"v_fma_f32 v{A_+1}, -v{A_}, v{A_}, v{A_+1}")
            L.append(f"v_and_b32 v{A_+2}, v{vHM}, v{M}")
            L.append(f"v_max_f32 v{A_+1}, 0, v{A_+1}")
            L.append(f"v_sub_f32 v{A_+2}, v{A_}, v{A_+2}")
            L.append(f"v_add_f32 v{ir2[rt]}, 0x3727c5ac, v{A_+1}")
            L.append(f"v_cvt_pk_bf16_f32 v{M+1}, v{A_+2}, 0")
            L.append(f"v_rsq_f32 v{rstd[rt]}, v{ir2[rt]}")
            L.append(f"v_cndmask_b32 v{M}, 0, v{M}, {S(sMASK,2)}")
            L.append(f"v_cndmask_b32 v{M+1}, 0, v{M+1}, {S(sMASK,2)}")
            L.append(f"v_mov_b32 v{M+2}, 0")
            L.append(f"v_mov_b32 v{M+3}, 0")
            if ffn:
                L.append(f"v_mul_f32 v{rl[rt]}, 0xbfb8aa3b, v{rstd[rt]}")
            ml.append(L)
        for n in range(NT):
            c_ = CR[n]
            L = []
            L.append(f"v_add_f32 v{c_}, v{c_}, v{c_+1}")
            if kind == "kv" or n == 2:
                L.append(f"v_add_f32 v{c_+2}, v{c_+2}, v{c_+3}")
                L.append(f"v_add_f32 v{c_}, v{c_}, v{c_+2}")
            L.append(f"v_cvt_pk_bf16_f32 v{c_+1}, v{c_}, v{c_}")
            L.append(f"v_and_b32 v{c_+1}, v{vHM}, v{c_+1}")
            L.append(f"v_sub_f32 v{c_+1}, v{c_}, v{c_+1}")
            L.append(f"v_cvt_pk_bf16_f32 v{c_}, v{c_}, v{c_+1}")
            L.append(f"v_mov_b32 v{c_+1}, v{c_}")
            L.append(f"v_mov_b32 v{c_+2}, 0")
            L.append(f"v_mov_b32 v{c_+3}, 0")
            ml.append(L)
        interleave(a, mf(7, 2), zipl(*ml))
        stamp(a, 4)

        def fin(n):
            rt, tl = tiles[n]
            return [m1(3, n), f"{MFMA} {V(acc[n],16)}, {V(CR[tl],4)}, {V(Mop[rt],4)}, {V(acc[n],16)}"]

        if ffn:
            EB = [fx[1][0], fx[2][0]]
            assert fx[1][1] == fx[1][0] + 4 and fx[2][1] == fx[2][0] + 4
            dst = [(dO0, sO[0], 0), (dO0, sO[0], 1024), (dO1, sO[0], 0), (dO1, sO[0], 1024), (dO0, sO[1], 0)]

            def epi(n):
                c_ = acc[n]; rt = tiles[n][0]; E = EB[n & 1]
                d, so, off = dst[n]
                L = []
                L += [f"v_mul_f32 v{E+i}, v{c_+i}, v{rl[rt]}" for i in range(8)]
                L += [f"v_exp_f32 v{E+i}, v{E+i}" for i in range(8)]
                L += [f"v_mul_f32 v{c_+i}, v{c_+i}, v{c_+8+i}" for i in range(8)]
                L += [f"v_fma_f32 v{E+i}, v{E+i}, v{ir2[rt]}, v{ir2[rt]}" for i in range(8)]
                L += [f"v_rcp_f32 v{E+i}, v{E+i}" for i in range(8)]
                L += [f"v_mul_f32 v{c_+i}, v{c_+i}, v{E+i}" for i in range(8)]
                L += pack8l(c_ + 8, c_)
                L.append(f"buffer_store_dwordx4 {V(c_+8,4)}, v{vO}, {S(d,4)}, s{so} offen offset:{off}{STF}")
                return L
        elif kind == "q":
            so_ = sO

            def epi(n):
                c_ = acc[n]; rt = tiles[n][0]
                L = [f"v_mul_f32 v{c_+i}, v{c_+i}, v{rstd[rt]}" for i in range(16)]
                L += pack8l(c_, c_) + pack8l(c_ + 4, c_ + 8)
                L.append(f"buffer_store_dwordx4 {V(c_,4)}, v{vO}, {S(dO0,4)}, s{so_[n]} offen{STF}")
                L.append(f"buffer_store_dwordx4 {V(c_+4,4)}, v{vO}, {S(dO0,4)}, s{so_[n]} offen offset:1024{STF}")
                return L
        if kind != "kv":
            nt = len(tiles)
            emit(a, fin(0) + fin(1))
            for n in range(nt):
                if n + 2 < nt:
                    interleave(a, fin(n + 2), epi(n))
                else:
                    emit(a, epi(n))
        else:
            kv_epilogue(a, locals())
        stamp(a, 5)
        stamp_out(a, 0, sWS, sWV, dWE)
        a.I("s_endpgm")


def w2_prefetch(a, vt, junk, vTID):
    a.I(f"s_mul_i32 s{sT}, s{sJ}, 59")
    a.I(f"v_lshrrev_b32 v{vt}, 3, v{vTID}")
    a.I(f"v_min_u32 v{vt}, 58, v{vt}")
    a.I(f"v_add_u32 v{vt}, s{sT}, v{vt}")
    a.I(f"v_lshlrev_b32 v{vt}, 10, v{vt}")
    a.I(f"v_and_b32 v{vt+1}, 7, v{vTID}")
    a.I(f"v_lshl_add_u32 v{vt}, v{vt+1}, 7, v{vt}")
    a.I(f"v_subrev_u32 v{vt+1}, {1376*1024}, v{vt}")
    srd(a, 84 if not OPT["stamp"] else dO0, 40, 41, 1376 * 1024)
    srd(a, 88 if not OPT["stamp"] else dO1, 42, 43, 512 * 1024)
    if OPT["pfw2"]:
        a.I(f"buffer_load_dword v{junk}, v{vt}, {S(84 if not OPT['stamp'] else dO0,4)}, 0 offen")
        a.I(f"buffer_load_dword v{junk+1}, v{vt+1}, {S(88 if not OPT['stamp'] else dO1,4)}, 0 offen")
    return 2 if OPT["pfw2"] else 0


def sentinel_fill(a, vt, quad, vTID, d):
    srd(a, d, sWS, sWS + 1, 64 * 32 * 1024, add=OB)
    a.I(f"v_lshlrev_b32 v{vt}, 4, v{vTID}")
    a.I(f"s_lshl_b32 s{sT}, s2, 13")
    for i in range(4):
        a.I(f"v_mov_b32 v{quad+i}, -1")
    a.I(f"buffer_store_dwordx4 {V(quad,4)}, v{vt}, {S(d,4)}, s{sT} offen")


KV_PIT = 112
KV_UNIT = 32 * KV_PIT
KV_WSC = 4 * KV_UNIT


def kv_addr(a, kvr, t, vL, SLOT):
    aWr, aPh, aV, aP, aPad = kvr[:5]
    PIT = KV_PIT
    a.I(f"v_and_b32 v{t[1]}, 31, v{vL}")
    a.I(f"v_lshrrev_b32 v{t[2]}, 5, v{vL}")
    a.I(f"v_bfe_u32 v{t[3]}, v{vL}, 2, 2")
    a.I(f"v_and_b32 v{t[4]}, 3, v{vL}")
    a.I(f"v_bfe_u32 v{t[5]}, v{vL}, 4, 1")
    a.I(f"s_mul_i32 s{sT}, s{sWV}, {KV_WSC}")
    a.I(f"v_mul_u32_u24 v{aPad}, {PIT}, v{t[1]}")
    a.I(f"v_add_u32 v{aPad}, s{sT}, v{aPad}")
    a.I(f"v_lshl_add_u32 v{aWr}, v{t[2]}, 4, v{aPad}")
    a.I(f"v_and_b32 v{t[6]}, 1, v{t[4]}")
    a.I(f"v_lshlrev_b32 v{t[6]}, 4, v{t[6]}")
    a.I(f"v_lshrrev_b32 v{t[7]}, 1, v{t[4]}")
    a.I(f"v_lshl_add_u32 v{t[6]}, v{t[7]}, 3, v{t[6]}")
    a.I(f"v_lshl_add_u32 v{t[7]}, v{t[2]}, 3, v{t[3]}")
    a.I(f"v_mul_u32_u24 v{t[7]}, {PIT}, v{t[7]}")
    a.I(f"v_add_u32 v{t[7]}, s{sT}, v{t[7]}")
    a.I(f"v_lshl_add_u32 v{aPh}, v{t[5]}, 5, v{t[7]}")
    a.I(f"v_add_u32 v{aPh}, v{aPh}, v{t[6]}")
    a.I(f"v_add_u32 v{t[6]}, 64, v{t[6]}")
    a.I(f"v_cmp_eq_u32 vcc, 0, v{t[5]}")
    a.I(f"v_mov_b32 v{aV}, 96")
    a.I(f"v_cndmask_b32 v{aV}, v{aV}, v{t[6]}, vcc")
    a.I(f"v_add_u32 v{aV}, v{aV}, v{t[7]}")
    a.I(f"v_lshl_add_u32 v{aP}, v{t[2]}, 2, v{t[3]}")
    a.I(f"v_lshlrev_b32 v{aP}, 5, v{aP}")
    a.I(f"v_lshl_add_u32 v{aP}, v{t[4]}, 3, v{aP}")
    a.I(f"s_lshl_b32 s{sT2}, s{sWV}, 10")
    a.I(f"s_add_u32 s{sT2}, s{sT2}, {3*SLOT}")
    a.I(f"v_add_u32 v{aP}, s{sT2}, v{aP}")


def kv_epilogue(a, e):
    acc, t, rstd, vL, fin, kvr, vO = e["acc"], e["t"], e["rstd"], e["vL"], e["fin"], e["kvr"], e["vO"]
    setbase, adr, u = e["setbase"], e["adr"], e["u"]
    aWr, aPh, aV, aP, aPad = kvr[:5]
    WP = kvr[5:7]
    PIT, UNIT, WSC = KV_PIT, KV_UNIT, KV_WSC
    D = [setbase + 16 * n for n in range(4)]
    T4 = [adr[0][0], adr[0][1], adr[1][0], adr[1][1]]
    sgn = t[1]

    def scale(n):
        c_ = acc[n]; rt = n >> 1
        L = [f"v_mul_f32 v{c_+i}, v{c_+i}, v{rstd[rt]}" for i in range(16)]
        return L + pack8l(c_, c_) + pack8l(c_ + 4, c_ + 8)
    pre = [f"v_bfe_u32 v{sgn}, v{vL}, 4, 1", f"v_mul_u32_u24 v{sgn}, 0x8000, v{sgn}", f"v_lshl_or_b32 v{sgn}, v{sgn}, 16, v{sgn}"]
    for hd in range(2):
        pre += [f"v_xor_b32 v{WP[hd]+i}, v{WP[hd]+i}, v{sgn}" for i in range(4)]
    interleave(a, fin(0) + fin(2), pre)
    interleave(a, fin(1) + fin(3), scale(0) + scale(2))
    for n in range(4):
        rt, hd = n >> 1, n & 1
        a.I(f"{MFMA} {V(D[n],16)}, {V(WP[hd],4)}, {V(acc[2*rt]+4*hd,4)}, 0")
    for rt in range(2):
        emit(a, scale(2 * rt + 1))
        for hd in range(2):
            a.I(f"ds_write_b128 v{aWr}, {V(acc[2*rt+1]+4*hd,4)} offset:{(2*rt+hd)*UNIT+64}")

    def unit(n):
        L = softmax_pm(D[n], T4[n], sL2E) + pack8l(D[n], D[n]) + pack8l(D[n] + 4, D[n] + 8)
        L.append(f"ds_write_b128 v{aWr}, {V(D[n],4)} offset:{n*UNIT}")
        L.append(f"ds_write_b128 v{aWr}, {V(D[n]+4,4)} offset:{n*UNIT+32}")
        return L
    KV = [acc[0], acc[2]]
    F = [acc[1], acc[3]]

    def trreads(n):
        f = F[n & 1]
        L = []
        for kk in range(2):
            o = n * UNIT + kk * 16 * PIT
            L.append(f"ds_read_b64_tr_b16 {V(f+4*kk,2)}, v{aPh} offset:{o}")
            L.append(f"ds_read_b64_tr_b16 {V(f+4*kk+2,2)}, v{aPh} offset:{o+4*PIT}")
            L.append(f"ds_read_b64_tr_b16 {V(f+8+4*kk,2)}, v{aV} offset:{o}")
            L.append(f"ds_read_b64_tr_b16 {V(f+8+4*kk+2,2)}, v{aV} offset:{o+4*PIT}")
        return L

    def kvm(n):
        f = F[n & 1]; hd = n & 1
        L = []
        for kk in range(2):
            cc = "0" if (n < 2 and kk == 0) else V(KV[hd], 16)
            L.append(f"{MFMA} {V(KV[hd],16)}, {V(f+4*kk,4)}, {V(f+8+4*kk,4)}, {cc}")
        return L
    emit(a, zipl(unit(0), unit(1)))
    a.I("s_waitcnt lgkmcnt(0)")
    emit(a, trreads(0) + trreads(1))
    u23 = zipl(unit(2), unit(3))
    half = len(u23) // 2
    emit(a, u23[:half])
    a.I("s_waitcnt lgkmcnt(0)")
    interleave(a, kvm(0) + kvm(1), u23[half:])
    a.I("s_waitcnt lgkmcnt(0)")
    emit(a, trreads(2) + trreads(3))
    a.I(f"s_mul_i32 s{sT}, s{sWV}, {WSC}")
    a.I(f"v_add_u32 v{aWr}, s{sT}, v{vO}")
    a.I(f"s_mul_i32 s{sT}, s{sRH}, {WSC}")
    a.I(f"s_lshl_b32 s{sT2}, s{sCQ}, 10")
    a.I(f"s_add_u32 s{sT}, s{sT}, s{sT2}")
    a.I(f"v_add_u32 v{aPad}, s{sT}, v{vO}")
    a.I(f"v_add_u32 v{aP}, {4*WSC}, v{aPad}")
    a.I("s_waitcnt lgkmcnt(8)")
    emit(a, kvm(2))
    a.I("s_waitcnt lgkmcnt(0)")
    emit(a, kvm(3))
    for hd in range(2):
        for q in range(4):
            a.I(f"ds_write_b128 v{aWr}, {V(KV[hd]+4*q,4)} offset:{hd*4096+q*1024}")
    a.I("s_waitcnt lgkmcnt(0)")
    a.I("s_barrier")
    for hd in range(2):
        for q in range(4):
            ad = aPad if q < 2 else aP
            a.I(f"ds_read_b128 {V(KV[hd]+4*q,4)}, v{ad} offset:{(q&1)*2*WSC + hd*4096}")
    for hd in range(2):
        a.I(f"s_waitcnt lgkmcnt({4*(1-hd)})")
        k = KV[hd]
        for i in range(4):
            a.I(f"v_add_f32 v{k+i}, v{k+i}, v{k+4+i}")
            a.I(f"v_add_f32 v{k+8+i}, v{k+8+i}, v{k+12+i}")
        for i in range(4):
            a.I(f"v_add_f32 v{k+i}, v{k+i}, v{k+8+i}")
        a.I(f"buffer_store_dwordx4 {V(k,4)}, v{vO}, {S(dO0,4)}, s{e['sO'][hd]} offen{STF}")


def gen_k1():
    a = Asm()
    a.I("s_cmp_ge_u32 s2, 256")
    a.I("s_cbranch_scc1 k1_end")
    stamp_init(a)
    a.I("s_load_dwordx4 s[4:7], s[0:1], 0")
    a.I("s_load_dwordx2 s[8:9], s[0:1], 16")
    a.I("s_load_dwordx4 s[12:15], s[0:1], 40")
    a.I("s_load_dwordx2 s[16:17], s[0:1], 80")
    a.I("s_load_dwordx2 s[40:41], s[0:1], 56")
    a.I("s_load_dwordx2 s[42:43], s[0:1], 24")
    a.I("v_mov_b32 v1, v0")
    a.I("v_lshrrev_b32 v2, 6, v0")
    a.I("v_and_b32 v0, 63, v0")
    a.I(f"v_readfirstlane_b32 s{sWV}, v2")
    a.I(f"s_and_b32 s{sXCD}, s2, 7")
    a.I(f"s_lshr_b32 s{sJ}, s2, 3")
    a.I(f"s_and_b32 s{sROWQ}, s{sXCD}, 3")
    a.I(f"s_lshr_b32 s{sCOLH}, s{sXCD}, 2")
    a.I(f"s_cmp_lt_u32 s{sJ}, 20")
    a.I("s_cbranch_scc1 k1_ffn")
    a.I(f"s_cmp_lt_u32 s{sJ}, 28")
    a.I("s_cbranch_scc1 k1_kv")
    k1_type(a, "q")
    a.L("k1_end")
    a.I("s_endpgm")
    k1_type(a, "kv")
    k1_type(a, "ffn")
    return a


def gen_k2():
    a = Asm()
    DEPTH = OPT["depth"]
    NH, NO = 22, 8
    POLL_AT = OPT["poll"]
    RING = DEPTH * 2048
    RP = 272
    LKV = max(4 * RING, 4 * 64 * RP)
    LPH = LKV + 16384
    LFL = LPH + 4096
    LDS_TOTAL = LFL + 64
    sXp, sWPH, sWO_, sW2, sOUT, sWSp = 4, 8, 10, 12, 14, 16
    dH0, dH1, dW2, dWOd, dOf0, dOf1, dXr, dOut = 20, 24, 28, 32, 36, 40, 44, 48
    sW, sGr, sJ2, sRB2, sCB, sA, sB, sM, sT_, sT2_, sL = 52, 53, 54, 55, 56, 57, 58, 59, 60, 61, 62
    sCNT, sPW, sHD, sRQ, sCHh = 63, 64, 65, 66, 67
    a.I("s_cmp_ge_u32 s2, 256")
    a.I("s_cbranch_scc1 k2_end")
    stamp_init(a)
    a.I("s_load_dwordx2 s[4:5], s[0:1], 0")
    a.I("s_load_dwordx4 s[8:11], s[0:1], 16")
    a.I("s_load_dwordx4 s[12:15], s[0:1], 56")
    a.I("s_load_dwordx2 s[16:17], s[0:1], 80")
    vL, vTID = 0, 1
    a.I("v_mov_b32 v1, v0")
    a.I("v_lshrrev_b32 v2, 6, v0")
    a.I("v_and_b32 v0, 63, v0")
    a.I(f"v_readfirstlane_b32 s{sW}, v2")
    code_prefetch(a, 2, 252, 16384, 512, vTID)
    a.I(f"v_mov_b32 v2, {LFL}")
    a.I("v_mov_b32 v4, 0")
    a.I("v_mov_b32 v5, 0")
    a.I("ds_write_b64 v2, v[4:5]")
    a.I(f"s_and_b32 s{sGr}, s2, 7")
    a.I(f"s_lshr_b32 s{sJ2}, s2, 3")
    a.I(f"s_and_b32 s{sRB2}, s{sJ2}, 3")
    a.I(f"s_lshl_b32 s{sT_}, s{sGr}, 2")
    a.I(f"s_add_u32 s{sRB2}, s{sRB2}, s{sT_}")
    a.I(f"s_cmp_ge_u32 s{sW}, 4")
    a.I("s_cbranch_scc1 k2_prod")
    r = Regs(2, 252, "v")
    vA = r.alloc(); vB0 = r.alloc(); vB1 = r.alloc(); aB = [r.alloc(), r.alloc()]
    t = [r.alloc() for _ in range(6)]
    acc = [r.alloc(16, 4) for _ in range(4)]
    fa = [[r.alloc(4, 4) for _ in range(2)] for _ in range(DEPTH)]
    fb = [[r.alloc(4, 4) for _ in range(2)] for _ in range(2)]
    xr = [r.alloc(4, 4) for _ in range(2)]
    a.I(f"s_lshr_b32 s{sCB}, s{sJ2}, 2")
    a.I(f"s_mul_i32 s{sA}, s{sCB}, {OPT['rotc']}")
    a.I(f"s_and_b32 s{sT_}, s{sJ2}, 3")
    a.I(f"s_mul_i32 s{sT_}, s{sT_}, {OPT['rotr']}")
    a.I(f"s_add_u32 s{sA}, s{sA}, s{sT_}")
    a.I(f"s_sub_u32 s{sT_}, s{sA}, 22")
    a.I(f"s_cmp_ge_u32 s{sA}, 22")
    a.I(f"s_cselect_b32 s{sA}, s{sT_}, s{sA}")
    if OPT["norot"]:
        a.I(f"s_mov_b32 s{sA}, 0")
    a.I(f"s_lshl_b32 s{sA}, s{sA}, 12")
    a.I(f"s_lshl_b32 s{sB}, s{sA}, 4")
    a.I(f"v_lshlrev_b32 v{vA}, 4, v{vL}")
    a.I(f"s_lshl_b32 s{sT_}, s{sW}, 10")
    a.I(f"v_add_u32 v{vA}, s{sT_}, v{vA}")
    a.I(f"v_lshrrev_b32 v{t[0]}, 3, v{vL}")
    a.I(f"v_and_b32 v{t[1]}, 7, v{vL}")
    a.I(f"v_and_b32 v{t[2]}, 2, v{t[0]}")
    a.I(f"v_lshlrev_b32 v{t[2]}, 1, v{t[2]}")
    a.I(f"v_xor_b32 v{t[2]}, v{t[2]}, v{t[1]}")
    a.I(f"v_lshlrev_b32 v{t[2]}, 4, v{t[2]}")
    a.I(f"v_lshl_add_u32 v{vB0}, v{t[0]}, 10, v{t[2]}")
    a.I(f"s_lshl_b32 s{sT_}, s{sW}, 14")
    a.I(f"s_lshl_b32 s{sT2_}, s{sCB}, 7")
    a.I(f"s_add_u32 s{sT_}, s{sT_}, s{sT2_}")
    a.I(f"v_add_u32 v{vB0}, s{sT_}, v{vB0}")
    a.I(f"v_add_u32 v{vB1}, 8192, v{vB0}")
    a.I(f"s_mul_i32 s{sM}, s{sW}, {RING}")
    a.I("s_waitcnt lgkmcnt(0)")
    a.I(f"s_mul_i32 s{sT_}, s{sRB2}, {2*86*1024}")
    srd(a, dH0, sWSp, sWSp + 1, 86 * 1024, add=f"s{sT_}")
    a.I(f"s_add_u32 s{sT_}, s{sT_}, {86*1024}")
    srd(a, dH1, sWSp, sWSp + 1, 86 * 1024, add=f"s{sT_}")
    srd(a, dW2, sW2, sW2 + 1, 1376 * 1024)

    vm = []
    sAo = sHD

    def issueA(step):
        s = step % DEPTH
        if OPT["k2noa"]:
            return
        if step < NH:
            a.I(f"buffer_load_dwordx4 {V(fa[s][0],4)}, v{vA}, {S(dH0,4)}, s{sA} offen")
            a.I(f"buffer_load_dwordx4 {V(fa[s][1],4)}, v{vA}, {S(dH1,4)}, s{sA} offen")
            a.I(f"s_add_u32 s{sA}, s{sA}, 4096")
            a.I(f"s_cmp_eq_u32 s{sA}, {NH*4096}")
            a.I(f"s_cselect_b32 s{sA}, 0, s{sA}")
            a.I(f"s_lshl_b32 s{sB}, s{sA}, 4")
        else:
            a.I(f"s_mov_b32 s{sAo}, {(step-NH)*4096}")
            a.I(f"buffer_load_dwordx4 {V(fa[s][0],4)}, v{vA}, {S(dOf0,4)}, s{sAo} offen sc1")
            a.I(f"buffer_load_dwordx4 {V(fa[s][1],4)}, v{vA}, {S(dOf1,4)}, s{sAo} offen sc1")
        vm.extend([("A", step)] * 2)

    def issueB(step):
        s = step % DEPTH
        d = dW2 if step < NH else dWOd
        if OPT["k2nob"]:
            return
        if step >= NH:
            a.I(f"s_mov_b32 s{sB}, {(step-NH)*65536}")
        a.I(f"s_add_u32 m0, s{sM}, {s*2048}")
        a.I(f"buffer_load_dwordx4 v{vB0}, {S(d,4)}, s{sB} offen lds")
        a.I(f"s_add_u32 m0, s{sM}, {s*2048+1024}")
        a.I(f"buffer_load_dwordx4 v{vB1}, {S(d,4)}, s{sB} offen lds")
        vm.extend([("B", step)] * 2)

    def wait_for(tags):
        hit = [i for i, tg in enumerate(vm) if tg in tags]
        if not hit:
            return
        idx = max(hit)
        n = len(vm) - 1 - idx
        a.I(f"s_waitcnt vmcnt({n})")
        del vm[:idx + 1]

    for st in range(DEPTH):
        issueB(st); issueA(st)
        if st == 1:
            a.I("s_barrier")
    srd(a, dWOd, sWO_, sWO_ + 1, 512 * 1024)
    a.I(f"s_lshl_b32 s{sT_}, s{sRB2}, 16")
    a.I(f"s_add_u32 s{sT_}, s{sT_}, {OB}")
    srd(a, dOf0, sWSp, sWSp + 1, 32 * 1024, add=f"s{sT_}")
    a.I(f"s_add_u32 s{sT_}, s{sT_}, {32*1024}")
    srd(a, dOf1, sWSp, sWSp + 1, 32 * 1024, add=f"s{sT_}")
    a.I(f"s_lshl_b32 s{sT_}, s{sRB2}, 16")
    srd(a, dXr, sXp, sXp + 1, 65536, add=f"s{sT_}")
    srd(a, dOut, sOUT, sOUT + 1, 65536, add=f"s{sT_}")
    a.I(f"v_lshrrev_b32 v{t[0]}, 5, v{vL}")
    a.I(f"v_bfe_u32 v{t[1]}, v{vL}, 2, 2")
    a.I(f"v_lshl_add_u32 v{t[0]}, v{t[0]}, 2, v{t[1]}")
    a.I(f"v_lshlrev_b32 v{t[0]}, 7, v{t[0]}")
    a.I(f"v_and_b32 v{t[2]}, 3, v{vL}")
    a.I(f"v_lshl_add_u32 v{t[0]}, v{t[2]}, 3, v{t[0]}")
    a.I(f"v_add_u32 v{t[0]}, s{sM}, v{t[0]}")
    a.I(f"v_bfe_u32 v{t[2]}, v{vL}, 4, 1")
    a.I(f"v_and_b32 v{t[1]}, 2, v{t[1]}")
    a.I(f"v_or_b32 v{t[2]}, v{t[2]}, v{t[1]}")
    a.I(f"v_lshl_add_u32 v{aB[0]}, v{t[2]}, 5, v{t[0]}")
    a.I(f"v_xor_b32 v{t[2]}, 2, v{t[2]}")
    a.I(f"v_lshl_add_u32 v{aB[1]}, v{t[2]}, 5, v{t[0]}")
    stamp(a, 1)

    def readsB(step):
        s = step % DEPTH
        f = fb[step & 1]
        for ct in range(2):
            a.I(f"ds_read_b64_tr_b16 {V(f[ct],2)}, v{aB[ct]} offset:{s*2048}")
            a.I(f"ds_read_b64_tr_b16 {V(f[ct]+2,2)}, v{aB[ct]} offset:{s*2048+1024}")

    NS = NH + NO
    nextA = DEPTH; nextB = DEPTH
    retries = []
    wait_for({("B", 0)})
    stamp(a, 2)
    readsB(0)
    for st in range(NS):
        if st == POLL_AT:
            stamp(a, 3)
            while nextA < NS and nextA < st + DEPTH:
                issueA(nextA); nextA += 1
        if st + 1 < NS:
            wait_for({("B", st + 1), ("A", st)})
            a.I("s_waitcnt lgkmcnt(0)")
            readsB(st + 1)
        else:
            wait_for({("A", st)})
            a.I("s_waitcnt lgkmcnt(0)")
        s = st % DEPTH
        f = fb[st & 1]
        if st == NH:
            stamp(a, 4)
        if st >= NH and not OPT["k2noa"]:
            z = fa[s][0]
            assert fa[s][1] == z + 4
            chk = [f"v_max3_u32 v{t[4]}, v{z}, v{z+1}, v{z+2}", f"v_max3_u32 v{t[5]}, v{z+3}, v{z+4}, v{z+5}",
                   f"v_max3_u32 v{t[4]}, v{z+6}, v{z+7}, v{t[4]}", f"v_max_u32 v{t[4]}, v{t[4]}, v{t[5]}",
                   f"v_cmp_eq_u32 vcc, -1, v{t[4]}"]
            emit(a, chk)
            a.I(f"s_cbranch_vccnz k2_retry{st}")
            a.L(f"k2_back{st}")
            retries.append((st, s, chk))
        for rt in range(2):
            for ct in range(2):
                c_ = acc[2 * rt + ct]
                cc = "0" if st == 0 else V(c_, 16)
                if not OPT["k2nom"]:
                    a.I(f"{MFMA} {V(c_,16)}, {V(f[ct],4)}, {V(fa[s][rt],4)}, {cc}")
        if nextB < NS:
            issueB(nextB); nextB += 1
        if nextA < NS and (nextA < NH or st >= POLL_AT) and nextA <= st + DEPTH:
            issueA(nextA); nextA += 1
        if st == NS - 10:
            a.I(f"v_lshrrev_b32 v{t[0]}, 3, v{vTID}")
            a.I(f"v_and_b32 v{t[1]}, 7, v{vTID}")
            a.I(f"v_lshlrev_b32 v{t[2]}, 10, v{t[0]}")
            a.I(f"v_lshl_add_u32 v{t[2]}, v{t[1]}, 4, v{t[2]}")
            a.I(f"s_lshl_b32 s{sT_}, s{sCB}, 7")
            a.I(f"v_add_u32 v{t[2]}, s{sT_}, v{t[2]}")
            a.I(f"v_add_u32 v{t[3]}, 32768, v{t[2]}")
            a.I(f"buffer_load_dwordx4 {V(xr[0],4)}, v{t[2]}, {S(dXr,4)}, 0 offen")
            a.I(f"buffer_load_dwordx4 {V(xr[1],4)}, v{t[3]}, {S(dXr,4)}, 0 offen")
            vm.extend([("X", 0)] * 2)
    assert nextA == NS and nextB == NS
    stamp(a, 5)
    a.I(f"v_and_b32 v{aB[0]}, 31, v{vL}")
    a.I(f"v_mul_u32_u24 v{aB[0]}, {RP}, v{aB[0]}")
    a.I(f"v_lshrrev_b32 v{aB[1]}, 5, v{vL}")
    a.I(f"v_lshl_add_u32 v{aB[0]}, v{aB[1]}, 4, v{aB[0]}")
    assert 64 * RP <= RING
    a.I(f"v_add_u32 v{aB[0]}, s{sM}, v{aB[0]}")
    a.I(f"v_mul_u32_u24 v{aB[1]}, {RP}, v{t[0]}")
    a.I(f"v_lshl_add_u32 v{aB[1]}, v{t[1]}, 5, v{aB[1]}")
    a.I(f"v_add_u32 v{vB0}, {2*RING}, v{aB[1]}")
    for rt in range(2):
        for ct in range(2):
            for q in range(4):
                a.I(f"ds_write_b128 v{aB[0]}, {V(acc[2*rt+ct]+4*q,4)} offset:{rt*32*RP + ct*128 + q*32}")
    a.I("s_waitcnt lgkmcnt(0)")
    a.I("s_barrier")
    Rr = acc[0]
    for hf in range(2):
        for w in range(4):
            for p in range(2):
                a.I(f"ds_read_b128 {V(Rr + hf*32 + w*8 + p*4, 4)}, v{aB[1] if w < 2 else vB0} offset:{(w&1)*RING + hf*32*RP + p*16}")
    a.I("s_waitcnt vmcnt(0)")
    for hf in range(2):
        a.I(f"s_waitcnt lgkmcnt({8*(1-hf)})")
        b = Rr + hf * 32
        for i in range(8):
            a.I(f"v_add_f32 v{b+i}, v{b+i}, v{b+8+i}")
            a.I(f"v_add_f32 v{b+16+i}, v{b+16+i}, v{b+24+i}")
        for i in range(4):
            a.I(f"v_lshlrev_b32 v{b+8+2*i}, 16, v{xr[hf]+i}")
            a.I(f"v_and_b32 v{b+8+2*i+1}, 0xffff0000, v{xr[hf]+i}")
        for i in range(8):
            a.I(f"v_add_f32 v{b+i}, v{b+i}, v{b+16+i}")
        for i in range(8):
            a.I(f"v_add_f32 v{b+i}, v{b+i}, v{b+8+i}")
        pack8(a, b + 16, b)
        a.I(f"buffer_store_dwordx4 {V(b+16,4)}, v{t[2+hf]}, {S(dOut,4)}, 0 offen")
    stamp_out(a, 1, sWSp, sW, dH0)
    a.L("k2_end")
    a.I("s_endpgm")
    for (st, s_, chk) in retries:
        a.L(f"k2_retry{st}")
        a.I(f"s_mov_b32 s{sCNT}, 0")
        a.I(f"s_mov_b32 s{sAo}, {(st-NH)*4096}")
        a.L(f"k2_rl{st}")
        a.I("s_sleep 2")
        a.I(f"buffer_load_dwordx4 {V(fa[s_][0],4)}, v{vA}, {S(dOf0,4)}, s{sAo} offen sc1")
        a.I(f"buffer_load_dwordx4 {V(fa[s_][1],4)}, v{vA}, {S(dOf1,4)}, s{sAo} offen sc1")
        a.I("s_waitcnt vmcnt(0)")
        emit(a, chk)
        a.I(f"s_add_u32 s{sCNT}, s{sCNT}, 1")
        a.I(f"s_cmp_gt_u32 s{sCNT}, 0x8000")
        a.I(f"s_cbranch_scc1 k2_back{st}")
        a.I(f"s_cbranch_vccnz k2_rl{st}")
        a.I(f"s_branch k2_back{st}")

    a.L("k2_prod")
    a.I("s_setprio 3")
    r = Regs(2, 252, "v")
    t = [r.alloc() for _ in range(8)]
    vO = r.alloc(); vK = r.alloc(); aP = r.alloc(); sgn = r.alloc(); aKW = r.alloc()
    KP = [r.alloc(16, 4) for _ in range(4)]
    QF = [r.alloc(4, 4) for _ in range(2)]
    WP = r.alloc(4, 4)
    D = [r.alloc(16, 4) for _ in range(2)]
    O = [r.alloc(16, 4) for _ in range(2)]
    T4 = [r.alloc(4) for _ in range(2)]
    dKV, dQ, dPH, dOF, dFL = 20, 24, 28, 32, 36
    a.I(f"s_sub_u32 s{sPW}, s{sW}, 4")
    a.I(f"s_mov_b32 s{sHD}, s{sJ2}")
    a.I(f"v_lshlrev_b32 v{vO}, 4, v{vL}")
    a.I(f"v_and_b32 v{t[0]}, 31, v{vL}")
    a.I(f"v_min_u32 v{t[0]}, 16, v{t[0]}")
    a.I(f"v_and_b32 v{t[1]}, 32, v{vL}")
    a.I(f"v_add_u32 v{t[0]}, v{t[0]}, v{t[1]}")
    a.I(f"v_lshlrev_b32 v{vK}, 4, v{t[0]}")
    a.I(f"s_lshl_b32 s{sT_}, s{sGr}, 3")
    a.I(f"s_lshl_b32 s{sT2_}, s{sPW}, 1")
    a.I(f"s_add_u32 s{sT_}, s{sT_}, s{sT2_}")
    a.I(f"s_lshl_b32 s{sT_}, s{sT_}, 5")
    a.I(f"s_add_u32 s{sT_}, s{sT_}, s{sHD}")
    a.I(f"s_lshl_b32 s{sA}, s{sT_}, 10")
    a.I(f"s_add_u32 s{sB}, s{sA}, 32768")
    a.I(f"s_lshl_b32 s{sM}, s{sPW}, 10")
    a.I(f"s_add_u32 s{sM}, s{sM}, {LPH}")
    a.I(f"s_lshl_b32 s{sCB}, s{sHD}, 9")
    a.I(f"s_mov_b32 m0, s{sM}")
    a.I(f"s_lshl_b32 s{sT_}, s{sPW}, 6")
    a.I(f"s_add_u32 s{sT_}, s{sT_}, s{sHD}")
    a.I(f"s_lshl_b32 s{sT_}, s{sT_}, 12")
    a.I(f"s_add_u32 s{sT2_}, s{sT_}, {32*4096}")
    a.I("s_waitcnt lgkmcnt(0)")
    srd(a, dPH, sWPH, sWPH + 1, 32 * 512)
    srd(a, dQ, sWSp, sWSp + 1, 64 * 32 * 1024, add=QB)
    srd(a, dKV, sWSp, sWSp + 1, 8 * 32 * 4096, add=KVB)
    a.I(f"buffer_load_dwordx4 v{vO}, {S(dPH,4)}, s{sCB} offen lds")
    a.I(f"buffer_load_dwordx4 {V(QF[0],4)}, v{vO}, {S(dQ,4)}, s{sA} offen")
    a.I(f"buffer_load_dwordx4 {V(QF[1],4)}, v{vO}, {S(dQ,4)}, s{sB} offen")
    for p, so in ((0, sT_), (1, sT2_)):
        for q in range(4):
            a.I(f"buffer_load_dwordx4 {V(KP[p]+4*q,4)}, v{vK}, {S(dKV,4)}, s{so} offen offset:{q*1024}")
    a.I("s_barrier")
    srd(a, dOF, sWSp, sWSp + 1, 64 * 32 * 1024, add=OB)
    a.I(f"s_mov_b32 s{sL}, {LOG2E}")
    a.I(f"v_mov_b32 v{t[2]}, {LFL}")
    a.I(f"v_mov_b32 v{t[3]}, 1")
    a.I(f"v_lshrrev_b32 v{t[4]}, 5, v{vL}")
    a.I(f"v_bfe_u32 v{t[5]}, v{vL}, 2, 2")
    a.I(f"v_lshl_add_u32 v{aP}, v{t[4]}, 2, v{t[5]}")
    a.I(f"v_lshlrev_b32 v{aP}, 5, v{aP}")
    a.I(f"v_and_b32 v{t[5]}, 3, v{vL}")
    a.I(f"v_lshl_add_u32 v{aP}, v{t[5]}, 3, v{aP}")
    a.I(f"v_add_u32 v{aP}, s{sM}, v{aP}")
    a.I(f"v_bfe_u32 v{t[5]}, v{vL}, 4, 1")
    a.I(f"v_mul_u32_u24 v{sgn}, 0x8000, v{t[5]}")
    a.I(f"v_lshl_or_b32 v{sgn}, v{sgn}, 16, v{sgn}")
    a.I(f"s_lshl_b32 s{sT_}, s{sPW}, 12")
    a.I(f"s_add_u32 s{sT_}, s{sT_}, {LKV}")
    a.I(f"v_add_u32 v{aKW}, s{sT_}, v{vO}")
    a.I("s_waitcnt vmcnt(8)")
    stamp(a, 1)
    a.I(f"ds_read_b64_tr_b16 {V(WP,2)}, v{aP}")
    a.I(f"ds_read_b64_tr_b16 {V(WP+2,2)}, v{aP} offset:256")
    a.I("s_waitcnt lgkmcnt(0)")
    for i in range(4):
        a.I(f"v_xor_b32 v{WP+i}, v{WP+i}, v{sgn}")
    for rt in range(2):
        a.I(f"{MFMA} {V(D[rt],16)}, {V(WP,4)}, {V(QF[rt],4)}, 0")
    a.I("s_waitcnt vmcnt(0)")
    stamp(a, 2)
    for i in range(16):
        a.I(f"v_add_f32 v{KP[0]+i}, v{KP[0]+i}, v{KP[1]+i}")
    for q in range(4):
        a.I(f"ds_write_b128 v{aKW}, {V(KP[0]+4*q,4)} offset:{q*1024}")
    sm = zipl(*[softmax_pm(D[rt], T4[rt], sL) + pack8l(D[rt], D[rt]) + pack8l(D[rt] + 4, D[rt] + 8) for rt in range(2)])
    emit(a, sm[:20])
    a.I("s_waitcnt lgkmcnt(0)")
    a.I("s_mov_b64 exec, 1")
    a.I(f"ds_add_u32 v{t[2]}, v{t[3]} offset:4")
    a.I("s_mov_b64 exec, -1")
    cut = len(sm) - 60
    emit(a, sm[20:cut])
    a.I(f"v_add_u32 v{aKW}, {LKV}, v{vO}")
    a.I(f"s_mov_b32 s{sCNT}, 0")
    a.L("k2_pc")
    a.I(f"ds_read_b32 v{t[4]}, v{t[2]} offset:4")
    a.I("s_waitcnt lgkmcnt(0)")
    a.I(f"v_readfirstlane_b32 s{sT_}, v{t[4]}")
    a.I(f"s_add_u32 s{sCNT}, s{sCNT}, 1")
    a.I(f"s_cmp_gt_u32 s{sCNT}, 0x40000")
    a.I("s_cbranch_scc1 k2_pc_done")
    a.I(f"s_cmp_lt_u32 s{sT_}, 4")
    a.I("s_cbranch_scc1 k2_pc")
    a.L("k2_pc_done")
    for p in range(4):
        for q in range(4):
            a.I(f"ds_read_b128 {V(KP[p]+4*q,4)}, v{aKW} offset:{p*4096+q*1024}")
    emit(a, sm[cut:])
    a.I("s_waitcnt lgkmcnt(0)")
    for i in range(16):
        a.I(f"v_add_f32 v{KP[0]+i}, v{KP[0]+i}, v{KP[1]+i}")
        a.I(f"v_add_f32 v{KP[2]+i}, v{KP[2]+i}, v{KP[3]+i}")
    for i in range(16):
        a.I(f"v_add_f32 v{KP[0]+i}, v{KP[0]+i}, v{KP[2]+i}")
    pack8(a, KP[1], KP[0])
    pack8(a, KP[1] + 4, KP[0] + 8)
    for rt in range(2):
        a.I(f"{MFMA} {V(O[rt],16)}, {V(KP[1],4)}, {V(D[rt],4)}, 0")
    for rt in range(2):
        a.I(f"{MFMA} {V(O[rt],16)}, {V(KP[1]+4,4)}, {V(D[rt]+4,4)}, {V(O[rt],16)}")
    for rt in range(2):
        o = O[rt]
        a.I(f"v_add_f32 v{o+8}, 0x358637bd, v{o+8}")
        a.I(f"v_rcp_f32 v{o+8}, v{o+8}")
        for i in range(8):
            a.I(f"v_mul_f32 v{o+i}, v{o+i}, v{o+8}")
        pack8(a, o + 12, o)
        a.I(f"buffer_store_dwordx4 {V(o+12,4)}, v{vO}, {S(dOF,4)}, s{sA if rt == 0 else sB} offen sc1")
    stamp(a, 3)
    stamp_out(a, 1, sWSp, sW, dKV)
    a.I("s_endpgm")
    return a, LDS_TOTAL


def descriptor(name, vgpr):
    return f""".section .rodata,"a"
.p2align 6
.amdhsa_kernel {name}
  .amdhsa_next_free_vgpr {vgpr}
  .amdhsa_next_free_sgpr 102
  .amdhsa_accum_offset {vgpr}
  .amdhsa_group_segment_fixed_size 0
  .amdhsa_kernarg_size 88
  .amdhsa_user_sgpr_count 2
  .amdhsa_user_sgpr_kernarg_segment_ptr 1
  .amdhsa_system_sgpr_workgroup_id_x 1
.end_amdhsa_kernel
"""


def main(out):
    ref = open(f"cdna_kernels/{NAME}.s.ref").read().split("\n")
    head = [l for l in ref if l.startswith(";") and "@launch" not in l and "Override" not in l and "grid=ceil" not in l]
    k1 = gen_k1()
    k2, lds2 = gen_k2()
    v = "-v" in sys.argv
    n1 = k1.fix_hazards(v); n2 = k2.fix_hazards(v)
    txt = "\n".join(head) + "\n"
    txt += f"; @launch kernel={K1} grid=(256,1,1) block=(512,1,1) lds=160128\n"
    txt += f"; @launch kernel={K2} grid=(256,1,1) block=(512,1,1) lds={lds2}\n"
    txt += '.amdgcn_target "amdgcn-amd-amdhsa--gfx950"\n.text\n'
    for name, k in ((K1, k1), (K2, k2)):
        txt += f".globl {name}\n.p2align 8\n.type {name},@function\n{name}:\n" + k.text()
    txt += ".fill 8192, 4, 0xbf810000\n"
    txt += descriptor(K1, 256) + descriptor(K2, 256)
    open(out, "w").write(txt)
    print(f"written {out}: hazard pads k1={n1} k2={n2}, k2 lds={lds2}")


if __name__ == "__main__":
    out = [x for x in sys.argv[1:] if not x.startswith("-")]
    main(out[0] if out else f"cdna_kernels/{NAME}.s")
```

```python
import sys, os
sys.path.insert(0, os.path.dirname(os.path.abspath(__file__)))
from asm import Asm, Regs, V, S

NAME = "parallel_sum__linear_kernel_hedgehog__glu_gated_swiglu__prompt"
KN = NAME + "_kernel"

HB = 0
QB = 0x600000
KVB = 0x800000
OB = 0x900000
FLB = 0xB00000
STB = 0xC00000
LOG2E = 0x3fb8aa3b
RS1 = 2752
RSQ = 3072
MFMA = "v_mfma_f32_32x32x16_bf16"
M16 = "v_mfma_f32_16x16x32_bf16"
OPT = dict(stamp="--stamp" in sys.argv, nodot="--nodot" in sys.argv, nodma="--nodma" in sys.argv,
           nomfma="--nomfma" in sys.argv, nolds="--nolds" in sys.argv,
           da=12, oat=18, stagger=1, pfw2=1, rotc=3, rotr=0, early=6, pre=16, fillch=3)
for _x in sys.argv:
    if _x.startswith("--") and "=" in _x:
        _k, _v = _x[2:].split("=")
        OPT[_k] = int(_v)
STF = " sc1"

DB = 16
RING = DB * 2048
L_SC = 4 * RING
L_KV = L_SC + 10240
L_PH = L_KV + 16384
L_CNT = 163776
LDS_TOTAL = 163840
assert L_PH + 4096 <= L_CNT

pX, pWQKV, pWPHI, pWO, pW1, pW3, pW2, pOUT, pDBG, pWS = 4, 6, 8, 10, 12, 14, 16, 18, 20, 22
dX, dWA, dWB, dWE, dO0, dO1, dOf0, dOf1, dFL, dDbg = 24, 28, 32, 36, 40, 44, 48, 52, 56, 64
dXr, dOut = dO0, dO1
dH0, dH1, dW2, dWOd = dX, dWA, dWB, dWE

sWV, sJ, sROWQ, sCOLH, sRB, sG, sRH, sCQ, sROT, sDST = 68, 69, 70, 71, 72, 73, 74, 75, 76, 77
sT, sT2, sT3, sELDS, sL2E, sRT0, sRT1, sTI, sMASK = 78, 79, 80, 81, 82, 83, 84, 85, 86
sO = [88, 89, 90, 91]
sGr, sRB2, sCB, sA, sB, sM, sCNT, sAo = 92, 93, 94, 95, 96, 97, 98, 99
sQ0, sQ1 = sA, sB
sFL = 3
sWO = sO[3]
vDX, vDW, vO = 2, 3, 4
vST = 255
VLIM = 255


def stamp(a, i):
    if OPT["stamp"]:
        a.I(f"{'s_memtime' if '--cyc' in sys.argv else 's_memrealtime'} s[100:101]")
        a.I("s_waitcnt lgkmcnt(0)")
        a.I(f"v_writelane_b32 v{vST}, s100, {i}")


def stamp_out(a):
    if not OPT["stamp"]:
        return
    a.I("s_waitcnt vmcnt(0)")
    stamp(a, 15)
    srd(a, dDbg, pWS, pWS + 1, 256 * 8 * 64, add=STB)
    a.I(f"s_lshl_b32 s{sT}, s2, 3")
    a.I(f"s_add_u32 s{sT}, s{sT}, s{sWV}")
    a.I(f"s_lshl_b32 s{sT}, s{sT}, 6")
    a.I("v_lshlrev_b32 v254, 2, v0")
    a.I("s_mov_b64 exec, 0xffff")
    a.I(f"buffer_store_dword v{vST}, v254, {S(dDbg,4)}, s{sT} offen")
    a.I("s_mov_b64 exec, -1")


def code_prefetch(a, vtmp, vjunk, ranges, vtid):
    a.I(f"v_lshlrev_b32 v{vtmp}, 4, v{vtid}")
    for (lab, nbytes) in ranges:
        here = f"pc{len(a.items)}"
        a.I("s_getpc_b64 s[96:97]")
        a.L(here)
        if lab is not None:
            a.I(f"s_add_u32 s96, s96, {lab}-{here}")
            a.I(f"s_addc_u32 s97, s97, 0")
        for i in range((nbytes + 8191) // 8192):
            a.I(f"global_load_dwordx4 {V(vjunk,4)}, v{vtmp}, s[96:97]")
            if (i + 1) * 8192 < nbytes:
                a.I("s_add_u32 s96, s96, 8192")
                a.I("s_addc_u32 s97, s97, 0")


def sentinel_check(regs, t0, t1):
    z = regs
    return [f"v_max3_u32 v{t0}, v{z}, v{z+1}, v{z+2}", f"v_max3_u32 v{t1}, v{z+3}, v{z+4}, v{z+5}",
            f"v_max3_u32 v{t0}, v{z+6}, v{z+7}, v{t0}", f"v_max_u32 v{t0}, v{t0}, v{t1}"]


def interleave(a, main, fill):
    n = len(main)
    k = 0
    for i, m in enumerate(main):
        a.I(m)
        upto = (len(fill) * (i + 1) + n - 1) // n if i < n - 1 else len(fill)
        while k < upto:
            f = fill[k]
            if callable(f):
                f()
            else:
                a.I(f)
            k += 1


def srd(a, d, lo, hi, size, add=None):
    if add is None:
        a.I(f"s_mov_b32 s{d}, s{lo}")
        a.I(f"s_and_b32 s{d+1}, s{hi}, 0xffff")
    else:
        a.I(f"s_add_u32 s{d}, s{lo}, {add}")
        a.I(f"s_addc_u32 s{d+1}, s{hi}, 0")
        a.I(f"s_and_b32 s{d+1}, s{d+1}, 0xffff")
    a.I(f"s_mov_b32 s{d+2}, {size}")
    a.I(f"s_mov_b32 s{d+3}, 0x20000")


def softmax_pm(D, T, sL):
    t0, t1, t2, t3 = T, T + 1, T + 2, T + 3
    L = []
    A = L.append
    A(f"v_max3_f32 v{t0}, v{D}, v{D+1}, v{D+2}")
    A(f"v_max3_f32 v{t1}, v{D+8}, v{D+9}, v{D+10}")
    A(f"v_max3_f32 v{t2}, v{D+3}, v{D+4}, v{D+5}")
    A(f"v_max3_f32 v{t3}, v{D+11}, v{D+12}, v{D+13}")
    A(f"v_max3_f32 v{t0}, v{D+6}, v{D+7}, v{t0}")
    A(f"v_max3_f32 v{t1}, v{D+14}, v{D+15}, v{t1}")
    A(f"v_max_f32 v{t0}, v{t0}, v{t2}")
    A(f"v_max_f32 v{t1}, v{t1}, v{t3}")
    A(f"v_permlane32_swap_b32 v{t0}, v{t1}")
    A(f"v_max_f32 v{t0}, v{t0}, v{t1}")
    A(f"v_mul_f32 v{t0}, s{sL}, v{t0}")
    A(f"v_mov_b32 v{t1}, v{t0}")
    A(f"v_permlane32_swap_b32 v{t0}, v{t1}")
    for i in range(16):
        A(f"v_fma_f32 v{D+i}, v{D+i}, s{sL}, -v{t0 if i < 8 else t1}")
    for i in range(16):
        A(f"v_exp_f32 v{D+i}, v{D+i}")
    A(f"v_add_f32 v{t0}, v{D}, v{D+1}")
    A(f"v_add_f32 v{t1}, v{D+8}, v{D+9}")
    A(f"v_add_f32 v{t2}, v{D+2}, v{D+3}")
    A(f"v_add_f32 v{t3}, v{D+10}, v{D+11}")
    for i in (4, 6):
        A(f"v_add_f32 v{t0}, v{t0}, v{D+i}")
        A(f"v_add_f32 v{t1}, v{t1}, v{D+8+i}")
        A(f"v_add_f32 v{t2}, v{t2}, v{D+i+1}")
        A(f"v_add_f32 v{t3}, v{t3}, v{D+8+i+1}")
    A(f"v_add_f32 v{t0}, v{t0}, v{t2}")
    A(f"v_add_f32 v{t1}, v{t1}, v{t3}")
    A(f"v_permlane32_swap_b32 v{t0}, v{t1}")
    A(f"v_add_f32 v{t0}, v{t0}, v{t1}")
    A(f"v_rcp_f32 v{t0}, v{t0}")
    A(f"v_mov_b32 v{t1}, v{t0}")
    A(f"v_permlane32_swap_b32 v{t0}, v{t1}")
    for i in range(16):
        A(f"v_mul_f32 v{D+i}, v{D+i}, v{t0 if i < 8 else t1}")
    return L


def zipl(*lists):
    out = []
    n = max(len(l) for l in lists)
    for i in range(n):
        for l in lists:
            if i < len(l):
                out.append(l[i])
    return out


def emit(a, L):
    for f in L:
        if callable(f):
            f()
        else:
            a.I(f)


def pack8l(dst, src):
    return [f"v_cvt_pk_bf16_f32 v{dst+i}, v{src+2*i}, v{src+2*i+1}" for i in range(4)]


def pack8(a, dst, src):
    for i in range(4):
        a.I(f"v_cvt_pk_bf16_f32 v{dst+i}, v{src+2*i}, v{src+2*i+1}")


def k1_type(a, kind):
    ffn = kind == "ffn"
    P = f"k1_{kind}"
    XI = 4 if kind == "kv" else 2
    SLOT = 53376 if ffn else 49152
    WOFF = 32768 if kind == "kv" else 16384
    UOFF = 18432 + 128
    RSW = RS1 if ffn else RSQ
    r = Regs(5, VLIM, "v")
    vL = 0
    vTID = 1
    acc = [r.alloc(16, 4) for _ in range(5 if ffn else 4)]
    setbase = r.mark()
    fx = []; fw = []
    for _ in range(4):
        fx.append([r.alloc(4, 4) for _ in range(2)])
        fw.append([r.alloc(4, 4) for _ in range(3 if ffn else 2)])
    cs = [r.alloc(4, 4) for _ in range(3 if ffn else 2)]
    sel = r.alloc(4, 4)
    junk = r.alloc(4, 4)
    ones4 = r.alloc(4, 4) if not ffn else None
    adr = [[r.alloc(4, 4) for _ in range(4 if ffn else 2)] for _ in range(2)]
    st = [[r.alloc() for _ in range(4)] for _ in range(2)]
    vDE = r.alloc()
    t = [r.alloc() for _ in range(8)]
    u = [r.alloc() for _ in range(4)]
    vHM = r.alloc()
    vZ = r.alloc()
    kvr = [r.alloc() for _ in range(5)] + [r.alloc(4, 4) for _ in range(2)] if kind == "kv" else None
    if ffn:
        Mop = [adr[1][0], adr[1][1]]
        ex = [adr[1][2] + i for i in range(4)] + [adr[1][3] + i for i in range(4)]
    else:
        Mop = [r.alloc(4, 4) for _ in range(2)]
        ex = [r.alloc() for _ in range(8)]
    CR = cs
    if ffn:
        ones4 = r.alloc(4, 4)

    a.L(P)
    code_prefetch(a, t[0], junk, [(None, 24576), ("p2_start", 24576)], vTID)
    if ffn:
        a.I(f"s_and_b32 s{sT}, s{sJ}, 3")
        a.I(f"s_lshl_b32 s{sRB}, s{sROWQ}, 2")
        a.I(f"s_add_u32 s{sRB}, s{sRB}, s{sT}")
        a.I(f"s_lshr_b32 s{sT}, s{sJ}, 2")
        a.I(f"s_mul_i32 s{sG}, s{sCOLH}, 5")
        a.I(f"s_add_u32 s{sG}, s{sG}, s{sT}")
        a.I(f"s_lshl_b32 s{sT2}, s{sRB}, 17")
        a.I(f"s_mul_i32 s{sWO}, s{sG}, 288")
    elif kind == "kv":
        a.I(f"s_sub_u32 s{sT}, s{sJ}, 20")
        a.I(f"s_and_b32 s{sT2}, s{sT}, 1")
        a.I(f"s_lshl_b32 s{sRB}, s{sROWQ}, 1")
        a.I(f"s_add_u32 s{sRB}, s{sRB}, s{sT2}")
        a.I(f"s_lshr_b32 s{sT}, s{sT}, 1")
        a.I(f"s_lshl_b32 s{sG}, s{sCOLH}, 2")
        a.I(f"s_add_u32 s{sG}, s{sG}, s{sT}")
        a.I(f"s_lshl_b32 s{sT2}, s{sRB}, 18")
        a.I(f"s_lshl_b32 s{sWO}, s{sG}, 7")
        a.I(f"s_add_u32 s{sWO}, s{sWO}, 1024")
    else:
        a.I(f"s_sub_u32 s{sT}, s{sJ}, 28")
        a.I(f"s_lshl_b32 s{sRB}, s{sROWQ}, 2")
        a.I(f"s_add_u32 s{sRB}, s{sRB}, s{sT}")
        a.I(f"s_mov_b32 s{sG}, s{sCOLH}")
        a.I(f"s_lshl_b32 s{sT2}, s{sRB}, 17")
        a.I(f"s_lshl_b32 s{sWO}, s{sCOLH}, 9")
    a.I(f"s_and_b32 s{sRH}, s{sWV}, 1")
    a.I(f"v_lshrrev_b32 v{t[0]}, 3, v{vL}")
    a.I(f"v_and_b32 v{t[1]}, 7, v{vL}")
    a.I(f"s_lshl_b32 s{sT}, s{sWV}, 3")
    a.I(f"v_add_u32 v{t[2]}, s{sT}, v{t[0]}")
    a.I(f"v_bfe_u32 v{t[3]}, v{t[2]}, 1, 3")
    a.I(f"v_xor_b32 v{t[3]}, v{t[3]}, v{t[1]}")
    a.I(f"v_lshlrev_b32 v{t[3]}, 4, v{t[3]}")
    a.I(f"v_lshl_add_u32 v{vDX}, v{t[2]}, 10, v{t[3]}")
    if ffn:
        a.I(f"s_mov_b32 s{sT3}, {RS1}")
        a.I(f"s_mov_b32 s{sT}, 3641")
        for (dst, pat) in ((vDW, None), (vDE, 8)):
            if pat is None:
                src = vTID
            else:
                a.I(f"v_add_u32 v{t[4]}, 512, v{vL}")
                src = t[4]
            a.I(f"v_mul_u32_u24 v{t[5]}, s{sT}, v{src}")
            a.I(f"v_lshrrev_b32 v{t[5]}, 16, v{t[5]}")
            a.I(f"v_mul_u32_u24 v{t[6]}, 18, v{t[5]}")
            a.I(f"v_sub_u32 v{t[6]}, v{src}, v{t[6]}")
            a.I(f"v_lshlrev_b32 v{t[6]}, 4, v{t[6]}")
            a.I(f"v_mad_u32_u24 v{dst}, v{t[5]}, s{sT3}, v{t[6]}")
        a.I(f"v_add_u32 v{vDW}, s{sWO}, v{vDW}")
        a.I(f"s_mul_i32 s{sT}, s{sRH}, {32*RS1}")
        a.I(f"s_add_u32 s{sT}, s{sT}, s{sWO}")
        a.I(f"v_add_u32 v{vDE}, s{sT}, v{vDE}")
    else:
        a.I(f"v_and_b32 v{t[3]}, 2, v{t[0]}")
        a.I(f"v_lshlrev_b32 v{t[3]}, 1, v{t[3]}")
        a.I(f"v_xor_b32 v{t[3]}, v{t[3]}, v{t[1]}")
        a.I(f"v_lshlrev_b32 v{t[3]}, 4, v{t[3]}")
        a.I(f"s_mov_b32 s{sT3}, {RSQ}")
        a.I(f"v_mad_u32_u24 v{vDW}, v{t[2]}, s{sT3}, v{t[3]}")
        a.I(f"v_add_u32 v{vDW}, s{sWO}, v{vDW}")
    a.I(f"s_lshl_b32 s{sDST}, s{sWV}, 10")
    if ffn:
        a.I(f"s_mul_i32 s{sT}, s{sRH}, 9216")
        a.I(f"s_bitcmp1_b32 s{sWV}, 1")
        a.I(f"s_cselect_b32 s{sELDS}, {UOFF}, 0")
        a.I(f"s_add_u32 s{sELDS}, s{sELDS}, {WOFF + 8192}")
        a.I(f"s_add_u32 s{sELDS}, s{sELDS}, s{sT}")
    a.I("s_waitcnt lgkmcnt(0)")
    srd(a, dX, pX, pX + 1, (256 if kind == "kv" else 128) * 1024, add=f"s{sT2}")
    if ffn:
        srd(a, dWA, pW1, pW1 + 1, 512 * RS1)
        srd(a, dWB, pW3, pW3 + 1, 512 * RS1)
        a.I(f"s_bitcmp1_b32 s{sWV}, 1")
        a.I(f"s_cselect_b32 s{dWE}, s{dWB}, s{dWA}")
        a.I(f"s_cselect_b32 s{dWE+1}, s{dWB+1}, s{dWA+1}")
        a.I(f"s_mov_b32 s{dWE+2}, {512*RS1}")
        a.I(f"s_mov_b32 s{dWE+3}, 0x20000")
    else:
        srd(a, dWA, pWQKV, pWQKV + 1, 512 * RSQ)

    vm = []

    def vmwait(c):
        idx = max([i for i, tg in enumerate(vm) if tg == c], default=-1)
        n = len(vm) - 1 - idx
        del vm[:idx + 1]
        return n

    def dma_list(cls, c):
        so = (c % 3) * SLOT
        L = []
        for i in range(XI):
            L.append((sDST, so + 8192 * i, c * 128 + 65536 * i, f"buffer_load_dwordx4 v{vDX}, {S(dX,4)}, %s offen lds"))
        if ffn:
            for (d, off) in ((dWA, 0), (dWB, UOFF)):
                for hi in range(2):
                    L.append((sDST, so + WOFF + off + 9216 * hi, c * 64 * RS1 + 32 * RS1 * hi, f"buffer_load_dwordx4 v{vDW}, {S(d,4)}, %s offen lds"))
            if cls == 1:
                L.append((sELDS, so, c * 64 * RS1, f"buffer_load_dwordx4 v{vDE}, {S(dWE,4)}, %s offen lds"))
        else:
            for rg in range(4 if kind == "q" else 2):
                g = 128 * rg if kind == "q" else 1024 * rg
                L.append((sDST, so + WOFF + 8192 * rg, c * 64 * RSQ + g, f"buffer_load_dwordx4 v{vDW}, {S(dWA,4)}, %s offen lds"))
        out = []
        for (sb, m0c, goff, ins) in L:
            def f(sb=sb, m0c=m0c, goff=goff, ins=ins):
                a.I(f"s_add_u32 m0, s{sb}, {m0c}")
                a.I(f"s_mov_b32 s{sT}, {goff}")
                a.I(ins % f"s{sT}")
                vm.append(c)
            out.append(f)
        return [] if OPT["nodma"] and c >= 2 else out

    classes = (0, 1)
    a.I(f"s_cmp_ge_u32 s{sWV}, 4")
    a.I(f"s_cbranch_scc1 {P}_c1")
    for cls in classes:
        C = f"{P}_c{cls}"
        a.L(C)
        del vm[:]
        extra = ffn and cls == 0
        NT = 3 if extra else 2
        emit(a, dma_list(cls, 0))
        if kind == "kv":
            srd(a, dWE, pWPHI, pWPHI + 1, 32 * 512)
            a.I(f"s_lshl_b32 s{sT}, s{sG}, 11")
            a.I(f"s_lshl_b32 s{sT2}, s{sRH}, 10")
            a.I(f"s_add_u32 s{sT}, s{sT}, s{sT2}")
            a.I(f"v_lshlrev_b32 v{vDE}, 4, v{vL}")
            a.I(f"s_add_u32 m0, s{sDST}, {3*SLOT}")
            a.I(f"buffer_load_dwordx4 v{vDE}, {S(dWE,4)}, s{sT} offen lds")
            vm.append("phi")
        a.I(f"s_lshr_b32 s{sCQ}, s{sWV}, 1")
        a.I(f"s_lshl_b32 s{sROT}, s{sRH}, 1")
        a.I(f"s_add_u32 s{sROT}, s{sROT}, s{sCQ}")
        a.I(f"s_and_b32 s{sROT}, s{sROT}, 3")
        a.I(f"v_and_b32 v{t[0]}, 31, v{vL}")
        a.I(f"v_lshrrev_b32 v{t[1]}, 5, v{vL}")
        a.I(f"v_bfe_u32 v{t[2]}, v{vL}, 1, 3")
        if kind == "kv":
            a.I(f"s_lshl_b32 s{sRT0}, s{sCQ}, 1")
            a.I(f"s_add_u32 s{sRT1}, s{sRT0}, 1")
        elif kind == "q":
            a.I(f"s_lshl_b32 s{sRT0}, s{sRH}, 1")
            a.I(f"s_add_u32 s{sRT1}, s{sRT0}, 1")
        else:
            a.I(f"s_and_b32 s{sT}, s{sCQ}, 1")
            a.I(f"s_lshl_b32 s{sRT0}, s{sRH}, 1")
            a.I(f"s_add_u32 s{sRT0}, s{sRT0}, s{sT}")
            a.I(f"s_xor_b32 s{sRT1}, s{sRT0}, 1")
        a.I(f"v_bfe_u32 v{t[4]}, v{vL}, 2, 2")
        a.I(f"v_lshl_add_u32 v{t[4]}, v{t[1]}, 3, v{t[4]}")
        a.I(f"v_and_b32 v{t[5]}, 3, v{vL}")
        a.I(f"v_lshlrev_b32 v{t[5]}, 3, v{t[5]}")
        a.I(f"v_bfe_u32 v{t[6]}, v{vL}, 4, 1")
        if ffn:
            a.I(f"s_mov_b32 s{sT3}, {UOFF}")
            a.I(f"v_mad_u32_u24 v{t[5]}, v{t[6]}, s{sT3}, v{t[5]}")
            a.I(f"v_mul_u32_u24 v{t[4]}, 288, v{t[4]}")
            a.I(f"v_add_u32 v{t[5]}, v{t[5]}, v{t[4]}")
            PITCH = 288
        else:
            if kind == "kv":
                a.I(f"s_lshl_b32 s{sT}, s{sRH}, 1")
            else:
                a.I(f"s_and_b32 s{sT}, s{sCQ}, 1")
                a.I(f"s_lshl_b32 s{sT}, s{sT}, 1")
            a.I(f"v_add_u32 v{t[6]}, s{sT}, v{t[6]}")
            a.I(f"v_and_b32 v{t[7]}, 2, v{t[4]}")
            a.I(f"v_xor_b32 v{t[6]}, v{t[6]}, v{t[7]}")
            a.I(f"v_lshl_add_u32 v{t[5]}, v{t[6]}, 5, v{t[5]}")
            a.I(f"v_lshl_add_u32 v{t[5]}, v{t[4]}, 7, v{t[5]}")
            PITCH = 128
        if ffn:
            a.I(f"s_lshl_b32 s{sT3}, s{sCQ}, 6")
            a.I(f"s_add_u32 s{sT3}, s{sT3}, {WOFF}")
        elif kind == "q":
            a.I(f"s_lshr_b32 s{sT3}, s{sCQ}, 1")
            a.I(f"s_lshl_b32 s{sT3}, s{sT3}, 14")
            a.I(f"s_add_u32 s{sT3}, s{sT3}, {WOFF}")
        else:
            a.I(f"s_mov_b32 s{sT3}, {WOFF}")
        for j in range(4):
            a.I(f"s_add_u32 s{sT}, s{sROT}, {j}")
            a.I(f"s_and_b32 s{sT}, s{sT}, 3")
            a.I(f"s_lshl_b32 s{sT2}, s{sT}, 1")
            a.I(f"v_add_u32 v{t[3]}, s{sT2}, v{t[1]}")
            a.I(f"v_xor_b32 v{t[3]}, v{t[3]}, v{t[2]}")
            a.I(f"v_lshlrev_b32 v{t[3]}, 4, v{t[3]}")
            a.I(f"v_lshl_add_u32 v{t[3]}, v{t[0]}, 7, v{t[3]}")
            a.I(f"s_lshl_b32 s{sT2}, s{sRT0}, 12")
            a.I(f"v_add_u32 v{adr[0][0]+j}, s{sT2}, v{t[3]}")
            if ffn:
                a.I(f"s_lshl_b32 s{sT2}, s{sRT1}, 12")
                a.I(f"v_add_u32 v{adr[0][2]+j}, s{sT2}, v{t[3]}")
            a.I(f"s_mul_i32 s{sT}, s{sT}, {16*PITCH}")
            a.I(f"s_add_u32 s{sT2}, s{sT}, s{sT3}")
            a.I(f"v_add_u32 v{adr[0][1]+j}, s{sT2}, v{t[5]}")
            if extra:
                a.I(f"s_add_u32 s{sT2}, s{sT}, {WOFF + 256}")
                a.I(f"v_add_u32 v{adr[0][3]+j}, s{sT2}, v{t[5]}")
        for k in range(len(adr[0]) if extra or not ffn else 3):
            for j in range(4):
                a.I(f"v_add_u32 v{adr[1][k]+j}, {2*SLOT}, v{adr[0][k]+j}")
        emit(a, dma_list(cls, 1))
        if kind == "kv":
            kv_addr(a, kvr, t, vL, SLOT)
        a.I(f"v_lshrrev_b32 v{t[0]}, 4, v{vL}")
        a.I(f"v_xor_b32 v{t[0]}, v{t[0]}, v{vL}")
        a.I(f"v_and_b32 v{t[0]}, 1, v{t[0]}")
        a.I(f"v_add_u32 v{t[0]}, -1, v{t[0]}")
        for i in range(4):
            a.I(f"v_and_b32 v{sel+i}, 0x3f803f80, v{t[0]}")
        for x in st[0] + st[1]:
            a.I(f"v_mov_b32 v{x}, 0")
        a.I(f"v_mov_b32 v{vHM}, 0xffff0000")
        a.I(f"s_mov_b32 s{sMASK}, -1")
        a.I(f"s_mov_b32 s{sMASK+1}, 0")
        a.I(f"s_mov_b32 s{sL2E}, {LOG2E}")
        T1 = 32 if ffn else 8192
        H2 = 4 * PITCH
        NR = 8 if extra else 6

        def reads(c, j):
            if OPT["nolds"]:
                return []
            b = adr[1 if c % 3 == 2 else 0]
            o = SLOT if c % 3 == 1 else 0
            L = []
            L.append(f"ds_read_b128 {V(fx[j][0],4)}, v{b[0]+j} offset:{o}")
            L.append(f"ds_read_b64_tr_b16 {V(fw[j][0],2)}, v{b[1]+j} offset:{o}")
            L.append(f"ds_read_b64_tr_b16 {V(fw[j][0]+2,2)}, v{b[1]+j} offset:{o+H2}")
            L.append(f"ds_read_b64_tr_b16 {V(fw[j][1],2)}, v{b[1]+j} offset:{o+T1}")
            L.append(f"ds_read_b64_tr_b16 {V(fw[j][1]+2,2)}, v{b[1]+j} offset:{o+T1+H2}")
            if ffn:
                L.append(f"ds_read_b128 {V(fx[j][1],4)}, v{b[2]+j} offset:{o}")
            else:
                L.append(f"ds_read_b128 {V(fx[j][1],4)}, v{b[0]+j} offset:{o+4096}")
            if extra:
                L.append(f"ds_read_b64_tr_b16 {V(fw[j][2],2)}, v{b[3]+j} offset:{o}")
                L.append(f"ds_read_b64_tr_b16 {V(fw[j][2]+2,2)}, v{b[3]+j} offset:{o+H2}")
            return L

        tiles = [(0, 0), (0, 1), (1, 0), (1, 1)] + ([(0, 2)] if extra else [])

        def m1(j, n, first=False):
            rt, tl = tiles[n]
            return f"{MFMA} {V(acc[n],16)}, {V(fw[j][tl],4)}, {V(fx[j][rt],4)}, {'0' if first else V(acc[n],16)}"

        def cs16(c, j):
            if OPT["nodot"]:
                return []
            if kind == "kv":
                tls = (0, 1) if j == 0 else ()
            else:
                tls = {0: (0, 1, 2) if extra else (0, 1), 1: (0, 1)}.get(j, ())
            return [f"{M16} {V(cs[tl],4)}, {V(fw[j][tl],4)}, {V(sel,4)}, {'0' if (c == 0 and j == 0) else V(cs[tl],4)}" for tl in tls]

        def mf(c, j, with_cs=True):
            if OPT["nomfma"]:
                return ["s_nop 0"] * 4
            L = [m1(j, n, first=(c == 0 and j == 0)) for n in range(len(tiles))]
            if with_cs:
                for i, x in enumerate(cs16(c, j)):
                    L.insert(2 * i + 1, x)
            return L

        def xstats(j):
            L = []
            for i in range(4):
                for rt in range(2):
                    lo, hi = u[2 * rt], u[2 * rt + 1]
                    L.append(f"v_lshlrev_b32 v{lo}, 16, v{fx[j][rt]+i}")
                    L.append(f"v_and_b32 v{hi}, v{vHM}, v{fx[j][rt]+i}")
                for rt in range(2):
                    lo, hi = u[2 * rt], u[2 * rt + 1]
                    L.append(f"v_add_f32 v{st[rt][0]}, v{st[rt][0]}, v{lo}")
                    L.append(f"v_add_f32 v{st[rt][1]}, v{st[rt][1]}, v{hi}")
                    L.append(f"v_fmac_f32 v{st[rt][2]}, v{lo}, v{lo}")
                    L.append(f"v_fmac_f32 v{st[rt][3]}, v{hi}, v{hi}")
            return [] if OPT["nodot"] else L

        SC = L_SC
        CS = SC + (8192 if kind == "kv" else 4096)
        slot_x = sRH if kind == "kv" else sCQ
        slot_c = sCQ if kind == "kv" else sRH
        TD = 1 if ffn else 2

        def exaddr():
            a.I(f"v_and_b32 v{t[0]}, 31, v{vL}")
            a.I(f"v_lshrrev_b32 v{t[1]}, 5, v{vL}")
            a.I(f"v_lshlrev_b32 v{t[2]}, 5, v{t[0]}")
            a.I(f"v_lshlrev_b32 v{t[3]}, 2, v{t[1]}")
            a.I(f"s_lshl_b32 s{sT}, s{slot_x}, 3")
            for rt, srt in ((0, sRT0), (1, sRT1)):
                a.I(f"s_lshl_b32 s{sT2}, s{srt}, 10")
                a.I(f"s_add_u32 s{sT2}, s{sT2}, {SC}")
                a.I(f"v_add_u32 v{ex[rt]}, s{sT2}, v{t[2]}")
                a.I(f"v_add3_u32 v{ex[2+rt]}, v{ex[rt]}, v{t[3]}, s{sT}")
            if ffn:
                a.I(f"s_lshl_b32 s{sTI}, s{sCQ}, 1")
            elif kind == "q":
                a.I(f"s_lshr_b32 s{sTI}, s{sCQ}, 1")
                a.I(f"s_lshl_b32 s{sTI}, s{sTI}, 2")
                a.I(f"s_and_b32 s{sT2}, s{sCQ}, 1")
                a.I(f"s_add_u32 s{sTI}, s{sTI}, s{sT2}")
            else:
                a.I(f"s_mov_b32 s{sTI}, s{sRH}")
            a.I(f"s_lshl_b32 s{sT2}, s{sTI}, 9")
            a.I(f"s_add_u32 s{sT2}, s{sT2}, {CS}")
            a.I(f"v_lshlrev_b32 v{t[4]}, 2, v{t[0]}")
            a.I(f"v_add_u32 v{ex[4]}, s{sT2}, v{t[4]}")
            a.I(f"v_and_b32 v{t[5]}, 1, v{vL}")
            a.I(f"v_lshlrev_b32 v{t[5]}, 6, v{t[5]}")
            a.I(f"v_lshrrev_b32 v{t[6]}, 4, v{vL}")
            a.I(f"v_lshl_add_u32 v{t[5]}, v{t[6]}, 4, v{t[5]}")
            a.I(f"s_lshl_b32 s{sT}, s{slot_c}, 7")
            a.I(f"s_add_u32 s{sT2}, s{sT2}, s{sT}")
            a.I(f"v_add_u32 v{ex[5]}, s{sT2}, v{t[5]}")
            if extra:
                a.I(f"v_add_u32 v{ex[6]}, {CS + 8*512}, v{t[4]}")
                a.I(f"s_lshl_b32 s{sT2}, s{sROT}, 7")
                a.I(f"s_add_u32 s{sT2}, s{sT2}, {CS + 8*512}")
                a.I(f"v_add_u32 v{ex[7]}, s{sT2}, v{t[5]}")

        def outsetup():
            if ffn:
                for rt, srt, d in ((0, sRT0, dO0), (1, sRT1, dO1)):
                    a.I(f"s_lshl_b32 s{sT}, s{sRB}, 2")
                    a.I(f"s_add_u32 s{sT}, s{sT}, s{srt}")
                    a.I(f"s_mul_i32 s{sT}, s{sT}, {86*1024}")
                    srd(a, d, pWS, pWS + 1, 86 * 1024, add=f"s{sT}")
                a.I(f"s_mul_i32 s{sO[1]}, s{sG}, {9*1024}")
                a.I(f"s_lshl_b32 s{sO[0]}, s{sCQ}, 11")
                a.I(f"s_add_u32 s{sO[0]}, s{sO[0]}, s{sO[1]}")
                a.I(f"s_add_u32 s{sO[1]}, s{sO[1]}, {8*1024}")
            elif kind == "q":
                srd(a, dO0, pWS, pWS + 1, 64 * 32 * 1024, add=QB)
                a.I(f"s_lshl_b32 s{sT3}, s{sTI}, 1")
                a.I(f"s_lshl_b32 s{sT}, s{sCOLH}, 4")
                a.I(f"s_add_u32 s{sT3}, s{sT3}, s{sT}")
                for srt, so in ((sRT0, sO[0]), (sRT1, sO[2])):
                    a.I(f"s_lshl_b32 s{sT}, s{sRB}, 2")
                    a.I(f"s_add_u32 s{sT}, s{sT}, s{srt}")
                    a.I(f"s_lshl_b32 s{sT}, s{sT}, 5")
                    a.I(f"s_add_u32 s{sT}, s{sT}, s{sT3}")
                    a.I(f"s_lshl_b32 s{so}, s{sT}, 10")
                a.I(f"s_add_u32 s{sO[1]}, s{sO[0]}, 4096")
                a.I(f"s_add_u32 s{sO[3]}, s{sO[2]}, 4096")
            else:
                srd(a, dO0, pWS, pWS + 1, 8 * 32 * 4096, add=KVB)
                a.I(f"s_lshl_b32 s{sT}, s{sRB}, 5")
                a.I(f"s_lshl_b32 s{sT3}, s{sG}, 2")
                a.I(f"s_add_u32 s{sT}, s{sT}, s{sT3}")
                a.I(f"s_lshl_b32 s{sT3}, s{sRH}, 1")
                a.I(f"s_add_u32 s{sT}, s{sT}, s{sT3}")
                a.I(f"s_lshl_b32 s{sT}, s{sT}, 12")
                a.I(f"s_lshl_b32 s{sT2}, s{sCQ}, 10")
                a.I(f"s_add_u32 s{sO[0]}, s{sT}, s{sT2}")
                a.I(f"s_add_u32 s{sO[1]}, s{sO[0]}, 4096")

        def capture(fn):
            n0 = len(a.items)
            fn()
            L = [it.text for it in a.items[n0:]]
            del a.items[n0:]
            return L

        if not ffn:
            exaddr()
        outsetup()
        p2_common_setup(a, cls)
        F_ = ones4
        for i in range(4):
            a.I(f"v_mov_b32 v{F_+i}, -1")
        fills = []
        if kind == "kv":
            fills = [(dO0, sO[0], 0), (dO0, sO[1], 0)]
        if cls == 1:
            fills += [(dOf0, sQ0, 0), (dOf0, sQ1, 0)]
        fq = []
        for (d, so, o) in fills:
            def ff(d=d, so=so, o=o):
                a.I(f"buffer_store_dwordx4 {V(F_,4)}, v{vO}, {S(d,4)}, s{so} offen offset:{o}{STF}")
                vm.append("fill")
            fq.append(ff)
        if kind != "kv":
            a.I(f"s_lshl_b32 s{sFL}, s{sRB}, 1")
            a.I(f"s_add_u32 s{sFL}, s{sFL}, s{sRH}")
            a.I(f"s_lshl_b32 s{sFL}, s{sFL}, 6")
            a.I(f"s_lshl_b32 s{sT}, s{sG}, 2")
            a.I(f"s_add_u32 s{sFL}, s{sFL}, s{sT}")
            a.I(f"s_add_u32 s{sFL}, s{sFL}, s{sCQ}")
            if kind == "q":
                a.I(f"s_add_u32 s{sFL}, s{sFL}, 48")
            a.I(f"s_lshl_b32 s{sFL}, s{sFL}, 2")
            a.I(f"v_mov_b32 v{vZ}, 0")

            def fz():
                a.I("s_mov_b64 exec, 1")
                a.I(f"buffer_store_dword v{vZ}, v{vZ}, {S(dFL,4)}, s{sFL} offen sc1")
                a.I("s_mov_b64 exec, -1")
                vm.append("fill")
            fq.insert(0, fz)
        FPC = (len(fq) + OPT["fillch"] - 1) // OPT["fillch"]
        a.I(f"v_mov_b32 v{t[0]}, {L_CNT}")
        a.I(f"v_mov_b32 v{t[1]}, 0")
        a.I(f"ds_write_b32 v{t[0]}, v{t[1]}")
        stamp(a, 1)
        carry = []
        late = OPT["stagger"] and cls == 1
        for c in range(7):
            a.I(f"s_waitcnt vmcnt({vmwait(c)}) lgkmcnt(0)")
            if c == 0:
                stamp(a, 2)
            if c == OPT["fillch"] + 2:
                assert "fill" not in vm
            a.I("s_barrier")
            if c == OPT["fillch"] + 2 and cls == 0:
                assert "fill" not in vm
                a.I(f"s_lshl_b32 s{sT}, s{sWV}, 12")
                a.I(f"v_mov_b32 v{t[0]}, 0")
                a.I(f"v_mov_b32 v{t[1]}, 1")
                a.I("s_mov_b64 exec, 1")
                a.I(f"buffer_atomic_add v{t[1]}, v{t[0]}, {S(dDbg,4)}, s{sT} offen")
                a.I("s_mov_b64 exec, -1")
                vm.append("atomic")
            dm = dma_list(cls, c + 2) if c + 2 < 8 else []
            x0 = xstats(0)
            if kind == "kv":
                x1 = xstats(1)
                pA, pB, pC, pD = carry, x0[:12], x0[12:36], x0[36:] + x1[:16]
                carry = x1[16:]
                if c == 6:
                    pD = x0[36:] + x1; carry = []
            else:
                pA, pB, pC, pD = [], x0[:12], x0[12:32], x0[32:]
            xtraB = []; xtraD = []
            if c < OPT["fillch"]:
                xtraD = fq[c * FPC:(c + 1) * FPC]
            if c == 5:
                L = capture(lambda: w2_prefetch(a, t[1], junk, vTID))
                npf = sum(1 for x in L if x.startswith("buffer"))
                xtraD = L + [lambda npf=npf: vm.extend(["pf"] * npf)]
            if c == 6:
                xtraB = (capture(exaddr) if ffn else []) + capture(lambda: p2_late_setup(a, cls, t))
            dA, dC = ([], dm) if (late and c) else (dm, [])
            if c == 0:
                emit(a, reads(c, 0) + dm + reads(c, 1))
                a.I(f"s_waitcnt lgkmcnt({NR})")
                emit(a, pB)
            else:
                interleave(a, mf(c - 1, 2), zipl(reads(c, 0), pA, dA))
                g = mf(c - 1, 3)
                h = (len(g) + 1) // 2
                interleave(a, g[:h], reads(c, 1) + xtraB)
                a.I(f"s_waitcnt lgkmcnt({NR})")
                interleave(a, g[h:], pB)
            interleave(a, mf(c, 0), zipl(reads(c, 2), pC, dC))
            a.I(f"s_waitcnt lgkmcnt({NR})")
            interleave(a, mf(c, 1), reads(c, 3) + (spread(pD, xtraD) if c < 5 and pD else pD + xtraD))
        stamp(a, 3)
        a.I(f"s_waitcnt vmcnt({vmwait(7)}) lgkmcnt(0)")
        a.I("s_barrier")
        pre = reads(7, 0) + reads(7, 1)
        if kind == "kv":
            WP = kvr[5:7]
            for hd in range(2):
                pre.append(f"ds_read_b64_tr_b16 {V(WP[hd],2)}, v{kvr[3]} offset:{512*hd}")
                pre.append(f"ds_read_b64_tr_b16 {V(WP[hd]+2,2)}, v{kvr[3]} offset:{512*hd+256}")
        g = mf(6, 2)
        a.I(g[0])
        emit(a, pre)
        emit(a, g[1:])
        a.I("s_waitcnt lgkmcnt(0)")
        g = mf(6, 3)
        cl = cs16(7, 0) + cs16(7, 1)
        g = cl + g if not OPT["nomfma"] else g
        interleave(a, g, zipl(reads(7, 2), xstats(0) + (xstats(1) if kind == "kv" else [])))
        emit(a, reads(7, 3))
        f3 = []
        for rt in range(2):
            f3.append(f"v_add_f32 v{st[rt][0]}, v{st[rt][0]}, v{st[rt][1]}")
            f3.append(f"v_add_f32 v{st[rt][2]}, v{st[rt][2]}, v{st[rt][3]}")
        for tl in range(2):
            f3.append(f"ds_write_b128 v{ex[5]}, {V(cs[tl],4)} offset:{512*TD*tl}")
        if extra:
            f3.append(f"ds_write_b128 v{ex[7]}, {V(cs[2],4)}")
        for rt in range(2):
            f3.append(f"v_permlane32_swap_b32 v{st[rt][0]}, v{st[rt][2]}")
        for rt in range(2):
            f3.append(f"v_add_f32 v{st[rt][0]}, v{st[rt][0]}, v{st[rt][2]}")
        for rt in range(2):
            f3.append(f"ds_write_b32 v{ex[2+rt]}, v{st[rt][0]}")
        g0 = mf(7, 0, with_cs=False)
        interleave(a, g0[:2], f3)
        emit(a, g0[2:])
        a.I("s_waitcnt lgkmcnt(0)")
        a.I("s_barrier")
        R = [fx[0][0], fx[0][1], fw[0][0], fw[0][1]]
        for rt in range(2):
            a.I(f"ds_read_b128 {V(R[2*rt],4)}, v{ex[rt]}")
            if kind != "kv":
                a.I(f"ds_read_b128 {V(R[2*rt+1],4)}, v{ex[rt]} offset:16")
        for tl in range(NT):
            ns = 4 if (kind == "kv" or tl == 2) else 2
            for sl in range(ns):
                if tl < 2:
                    a.I(f"ds_read_b32 v{CR[tl]+sl}, v{ex[4]} offset:{512*TD*tl + 128*sl}")
                else:
                    a.I(f"ds_read_b32 v{CR[tl]+sl}, v{ex[6]} offset:{128*sl}")
        vCN = u[0]
        a.I(f"v_mov_b32 v{u[1]}, 0")
        a.I(f"buffer_load_dword v{vCN}, v{u[1]}, {S(dDbg,4)}, 0 offen sc1")
        mark = len(a.items)
        eb = []
        f4 = []
        if kind == "kv":
            for i in range(4):
                f4.append(f"v_mov_b32 v{sel+i}, 0x3f803f80")
            for n in range(4):
                f4.append(f"ds_write_b128 v{kvr[4]}, {V(sel,4)} offset:{n*KV_UNIT+96}")
        interleave(a, mf(7, 1, with_cs=False), f4)
        a.I("s_waitcnt lgkmcnt(0)")
        rstd = [st[0][0], st[1][0]]
        ir2 = [st[0][1], st[1][1]]
        rl = [st[0][2], st[1][2]]
        ml = []
        for rt in range(2):
            A_, B_ = R[2 * rt], R[2 * rt + 1]
            M = Mop[rt]
            L = []
            L.append(f"v_add_f32 v{A_}, v{A_}, v{A_+2}")
            L.append(f"v_add_f32 v{A_+1}, v{A_+1}, v{A_+3}")
            if kind != "kv":
                L.append(f"v_add_f32 v{B_}, v{B_}, v{B_+2}")
                L.append(f"v_add_f32 v{B_+1}, v{B_+1}, v{B_+3}")
                L.append(f"v_add_f32 v{A_}, v{A_}, v{B_}")
                L.append(f"v_add_f32 v{A_+1}, v{A_+1}, v{B_+1}")
            L.append(f"v_mul_f32 v{A_}, 0xbb000000, v{A_}")
            L.append(f"v_mul_f32 v{A_+1}, 0x3b000000, v{A_+1}")
            L.append(f"v_cvt_pk_bf16_f32 v{M}, v{A_}, v{A_}")
            L.append(f"v_fma_f32 v{A_+1}, -v{A_}, v{A_}, v{A_+1}")
            L.append(f"v_and_b32 v{A_+2}, v{vHM}, v{M}")
            L.append(f"v_max_f32 v{A_+1}, 0, v{A_+1}")
            L.append(f"v_sub_f32 v{A_+2}, v{A_}, v{A_+2}")
            L.append(f"v_add_f32 v{ir2[rt]}, 0x3727c5ac, v{A_+1}")
            L.append(f"v_cvt_pk_bf16_f32 v{M+1}, v{A_+2}, 0")
            L.append(f"v_rsq_f32 v{rstd[rt]}, v{ir2[rt]}")
            L.append(f"v_cndmask_b32 v{M}, 0, v{M}, {S(sMASK,2)}")
            L.append(f"v_cndmask_b32 v{M+1}, 0, v{M+1}, {S(sMASK,2)}")
            L.append(f"v_mov_b32 v{M+2}, 0")
            L.append(f"v_mov_b32 v{M+3}, 0")
            if ffn:
                L.append(f"v_mul_f32 v{rl[rt]}, 0xbfb8aa3b, v{rstd[rt]}")
            ml.append(L)
        for n in range(NT):
            c_ = CR[n]
            L = []
            L.append(f"v_add_f32 v{c_}, v{c_}, v{c_+1}")
            if kind == "kv" or n == 2:
                L.append(f"v_add_f32 v{c_+2}, v{c_+2}, v{c_+3}")
                L.append(f"v_add_f32 v{c_}, v{c_}, v{c_+2}")
            L.append(f"v_cvt_pk_bf16_f32 v{c_+1}, v{c_}, v{c_}")
            L.append(f"v_and_b32 v{c_+1}, v{vHM}, v{c_+1}")
            L.append(f"v_sub_f32 v{c_+1}, v{c_}, v{c_+1}")
            L.append(f"v_cvt_pk_bf16_f32 v{c_}, v{c_}, v{c_+1}")
            L.append(f"v_mov_b32 v{c_+1}, v{c_}")
            L.append(f"v_mov_b32 v{c_+2}, 0")
            L.append(f"v_mov_b32 v{c_+3}, 0")
            ml.append(L)
        interleave(a, mf(7, 2), zipl(*ml))
        stamp(a, 4)

        def fin(n):
            rt, tl = tiles[n]
            return [m1(3, n), f"{MFMA} {V(acc[n],16)}, {V(CR[tl],4)}, {V(Mop[rt],4)}, {V(acc[n],16)}"]

        if ffn:
            EB = [fx[1][0], fx[2][0]]
            assert fx[1][1] == fx[1][0] + 4 and fx[2][1] == fx[2][0] + 4
            dst = [(dO0, sO[0], 0), (dO0, sO[0], 1024), (dO1, sO[0], 0), (dO1, sO[0], 1024), (dO0, sO[1], 0)]

            def epi(n):
                c_ = acc[n]; rt = tiles[n][0]; E = EB[n & 1]
                d, so, off = dst[n]
                L = []
                L += [f"v_mul_f32 v{E+i}, v{c_+i}, v{rl[rt]}" for i in range(8)]
                L += [f"v_exp_f32 v{E+i}, v{E+i}" for i in range(8)]
                L += [f"v_mul_f32 v{c_+i}, v{c_+i}, v{c_+8+i}" for i in range(8)]
                L += [f"v_fma_f32 v{E+i}, v{E+i}, v{ir2[rt]}, v{ir2[rt]}" for i in range(8)]
                L += [f"v_rcp_f32 v{E+i}, v{E+i}" for i in range(8)]
                L += [f"v_mul_f32 v{c_+i}, v{c_+i}, v{E+i}" for i in range(8)]
                L += pack8l(c_ + 8, c_)
                L.append(f"buffer_store_dwordx4 {V(c_+8,4)}, v{vO}, {S(d,4)}, s{so} offen offset:{off}{STF}")
                return L
        elif kind == "q":
            so_ = sO

            def epi(n):
                c_ = acc[n]; rt = tiles[n][0]
                L = [f"v_mul_f32 v{c_+i}, v{c_+i}, v{rstd[rt]}" for i in range(16)]
                L += pack8l(c_, c_) + pack8l(c_ + 4, c_ + 8)
                L.append(f"buffer_store_dwordx4 {V(c_,4)}, v{vO}, {S(dO0,4)}, s{so_[n]} offen{STF}")
                L.append(f"buffer_store_dwordx4 {V(c_+4,4)}, v{vO}, {S(dO0,4)}, s{so_[n]} offen offset:1024{STF}")
                return L
        if kind != "kv":
            nt = len(tiles)
            emit(a, fin(0) + fin(1))
            per = (len(eb) + nt - 1) // nt
            for n in range(nt):
                L = spread(epi(n), eb[n * per:(n + 1) * per])
                if n + 2 < nt:
                    interleave(a, fin(n + 2), L)
                else:
                    emit(a, L)
        else:
            kv_epilogue(a, locals())
        stamp(a, 5)
        if kind != "kv":
            a.I("s_barrier")
        early = OPT["early"] if cls == 0 else 0
        for tb in range(early):
            emit(a, issueB_parts(a, tb))
        if kind != "kv":
            a.I(f"v_mov_b32 v{u[2]}, 1")
            a.I(f"s_waitcnt vmcnt({2*early})")
            a.I("s_mov_b64 exec, 1")
            a.I(f"buffer_store_dword v{u[2]}, v{vZ}, {S(dFL,4)}, s{sFL} offen sc1")
            a.I("s_mov_b64 exec, -1")
        nv = sum(1 for it in a.items[mark:] if not isinstance(it, tuple) and it.cls == "vmem")
        a.I(f"s_waitcnt vmcnt({min(nv, 63)})")
        a.I(f"v_readfirstlane_b32 s{sT}, v{vCN}")
        a.I(f"s_cmp_eq_u32 s{sT}, 256")
        tgt = "p2_prod" if cls == 1 else (f"p2_gemm{early}")
        a.I(f"s_cbranch_scc1 {tgt}")
        a.I(f"s_mov_b32 s{sCNT}, 0")
        a.L(f"{C}_cw")
        a.I("s_sleep 4")
        a.I(f"buffer_load_dword v{vCN}, v{u[1]}, {S(dDbg,4)}, 0 offen sc1")
        a.I("s_waitcnt vmcnt(0)")
        a.I(f"v_readfirstlane_b32 s{sT}, v{vCN}")
        a.I(f"s_add_u32 s{sCNT}, s{sCNT}, 1")
        a.I(f"s_cmp_gt_u32 s{sCNT}, 0x8000")
        a.I(f"s_cbranch_scc1 {tgt}")
        a.I(f"s_cmp_eq_u32 s{sT}, 256")
        a.I(f"s_cbranch_scc0 {C}_cw")
        a.I(f"s_branch {tgt}")


KV_PIT = 112
KV_UNIT = 32 * KV_PIT
KV_WSC = 4 * KV_UNIT


def kv_addr(a, kvr, t, vL, SLOT):
    aWr, aPh, aV, aP, aPad = kvr[:5]
    PIT = KV_PIT
    a.I(f"v_and_b32 v{t[1]}, 31, v{vL}")
    a.I(f"v_lshrrev_b32 v{t[2]}, 5, v{vL}")
    a.I(f"v_bfe_u32 v{t[3]}, v{vL}, 2, 2")
    a.I(f"v_and_b32 v{t[4]}, 3, v{vL}")
    a.I(f"v_bfe_u32 v{t[5]}, v{vL}, 4, 1")
    a.I(f"s_mul_i32 s{sT}, s{sWV}, {KV_WSC}")
    a.I(f"v_mul_u32_u24 v{aPad}, {PIT}, v{t[1]}")
    a.I(f"v_add_u32 v{aPad}, s{sT}, v{aPad}")
    a.I(f"v_lshl_add_u32 v{aWr}, v{t[2]}, 4, v{aPad}")
    a.I(f"v_and_b32 v{t[6]}, 1, v{t[4]}")
    a.I(f"v_lshlrev_b32 v{t[6]}, 4, v{t[6]}")
    a.I(f"v_lshrrev_b32 v{t[7]}, 1, v{t[4]}")
    a.I(f"v_lshl_add_u32 v{t[6]}, v{t[7]}, 3, v{t[6]}")
    a.I(f"v_lshl_add_u32 v{t[7]}, v{t[2]}, 3, v{t[3]}")
    a.I(f"v_mul_u32_u24 v{t[7]}, {PIT}, v{t[7]}")
    a.I(f"v_add_u32 v{t[7]}, s{sT}, v{t[7]}")
    a.I(f"v_lshl_add_u32 v{aPh}, v{t[5]}, 5, v{t[7]}")
    a.I(f"v_add_u32 v{aPh}, v{aPh}, v{t[6]}")
    a.I(f"v_add_u32 v{t[6]}, 64, v{t[6]}")
    a.I(f"v_cmp_eq_u32 vcc, 0, v{t[5]}")
    a.I(f"v_mov_b32 v{aV}, 96")
    a.I(f"v_cndmask_b32 v{aV}, v{aV}, v{t[6]}, vcc")
    a.I(f"v_add_u32 v{aV}, v{aV}, v{t[7]}")
    a.I(f"v_lshl_add_u32 v{aP}, v{t[2]}, 2, v{t[3]}")
    a.I(f"v_lshlrev_b32 v{aP}, 5, v{aP}")
    a.I(f"v_lshl_add_u32 v{aP}, v{t[4]}, 3, v{aP}")
    a.I(f"s_lshl_b32 s{sT2}, s{sWV}, 10")
    a.I(f"s_add_u32 s{sT2}, s{sT2}, {3*SLOT}")
    a.I(f"v_add_u32 v{aP}, s{sT2}, v{aP}")


def kv_epilogue(a, e):
    acc, t, rstd, vL, fin, kvr = e["acc"], e["t"], e["rstd"], e["vL"], e["fin"], e["kvr"]
    setbase, adr, u = e["setbase"], e["adr"], e["u"]
    aWr, aPh, aV, aP, aPad = kvr[:5]
    WP = kvr[5:7]
    PIT, UNIT, WSC = KV_PIT, KV_UNIT, KV_WSC
    D = [setbase + 16 * n for n in range(4)]
    T4 = [adr[0][0], adr[0][1], adr[1][0], adr[1][1]]
    sgn = t[1]

    def scale(n):
        c_ = acc[n]; rt = n >> 1
        L = [f"v_mul_f32 v{c_+i}, v{c_+i}, v{rstd[rt]}" for i in range(16)]
        return L + pack8l(c_, c_) + pack8l(c_ + 4, c_ + 8)
    pre = [f"v_bfe_u32 v{sgn}, v{vL}, 4, 1", f"v_mul_u32_u24 v{sgn}, 0x8000, v{sgn}", f"v_lshl_or_b32 v{sgn}, v{sgn}, 16, v{sgn}"]
    for hd in range(2):
        pre += [f"v_xor_b32 v{WP[hd]+i}, v{WP[hd]+i}, v{sgn}" for i in range(4)]
    interleave(a, fin(0) + fin(2), pre)
    interleave(a, fin(1) + fin(3), scale(0) + scale(2))
    for n in range(4):
        rt, hd = n >> 1, n & 1
        a.I(f"{MFMA} {V(D[n],16)}, {V(WP[hd],4)}, {V(acc[2*rt]+4*hd,4)}, 0")
    for rt in range(2):
        emit(a, scale(2 * rt + 1))
        for hd in range(2):
            a.I(f"ds_write_b128 v{aWr}, {V(acc[2*rt+1]+4*hd,4)} offset:{(2*rt+hd)*UNIT+64}")

    def unit(n):
        L = softmax_pm(D[n], T4[n], sL2E) + pack8l(D[n], D[n]) + pack8l(D[n] + 4, D[n] + 8)
        L.append(f"ds_write_b128 v{aWr}, {V(D[n],4)} offset:{n*UNIT}")
        L.append(f"ds_write_b128 v{aWr}, {V(D[n]+4,4)} offset:{n*UNIT+32}")
        return L
    KV = [acc[0], acc[2]]
    F = [acc[1], acc[3]]

    def trreads(n):
        f = F[n & 1]
        L = []
        for kk in range(2):
            o = n * UNIT + kk * 16 * PIT
            L.append(f"ds_read_b64_tr_b16 {V(f+4*kk,2)}, v{aPh} offset:{o}")
            L.append(f"ds_read_b64_tr_b16 {V(f+4*kk+2,2)}, v{aPh} offset:{o+4*PIT}")
            L.append(f"ds_read_b64_tr_b16 {V(f+8+4*kk,2)}, v{aV} offset:{o}")
            L.append(f"ds_read_b64_tr_b16 {V(f+8+4*kk+2,2)}, v{aV} offset:{o+4*PIT}")
        return L

    def kvm(n):
        f = F[n & 1]; hd = n & 1
        L = []
        for kk in range(2):
            cc = "0" if (n < 2 and kk == 0) else V(KV[hd], 16)
            L.append(f"{MFMA} {V(KV[hd],16)}, {V(f+4*kk,4)}, {V(f+8+4*kk,4)}, {cc}")
        return L
    emit(a, zipl(unit(0), unit(1)))
    a.I("s_waitcnt lgkmcnt(0)")
    emit(a, trreads(0) + trreads(1))
    u23 = zipl(unit(2), unit(3))
    half = len(u23) // 2
    emit(a, u23[:half])
    a.I("s_waitcnt lgkmcnt(0)")
    interleave(a, kvm(0) + kvm(1), u23[half:])
    a.I("s_waitcnt lgkmcnt(0)")
    emit(a, trreads(2) + trreads(3))
    a.I(f"s_mul_i32 s{sT}, s{sWV}, {WSC}")
    a.I(f"v_add_u32 v{aWr}, s{sT}, v{vO}")
    a.I(f"s_mul_i32 s{sT}, s{sRH}, {WSC}")
    a.I(f"s_lshl_b32 s{sT2}, s{sCQ}, 10")
    a.I(f"s_add_u32 s{sT}, s{sT}, s{sT2}")
    a.I(f"v_add_u32 v{aPad}, s{sT}, v{vO}")
    a.I(f"v_add_u32 v{aP}, {4*WSC}, v{aPad}")
    a.I("s_waitcnt lgkmcnt(8)")
    emit(a, kvm(2))
    a.I("s_waitcnt lgkmcnt(0)")
    emit(a, kvm(3))
    for hd in range(2):
        for q in range(4):
            a.I(f"ds_write_b128 v{aWr}, {V(KV[hd]+4*q,4)} offset:{hd*4096+q*1024}")
    a.I("s_waitcnt lgkmcnt(0)")
    a.I("s_barrier")
    for hd in range(2):
        for q in range(4):
            ad = aPad if q < 2 else aP
            a.I(f"ds_read_b128 {V(KV[hd]+4*q,4)}, v{ad} offset:{(q&1)*2*WSC + hd*4096}")
    for hd in range(2):
        a.I(f"s_waitcnt lgkmcnt({4*(1-hd)})")
        k = KV[hd]
        for i in range(4):
            a.I(f"v_add_f32 v{k+i}, v{k+i}, v{k+4+i}")
            a.I(f"v_add_f32 v{k+8+i}, v{k+8+i}, v{k+12+i}")
        for i in range(4):
            a.I(f"v_add_f32 v{k+i}, v{k+i}, v{k+8+i}")
        a.I(f"buffer_store_dwordx4 {V(k,4)}, v{vO}, {S(dO0,4)}, s{sO[hd]} offen{STF}")
    a.I("s_barrier")


def spread(main, extra):
    if not extra:
        return list(main)
    out = []
    k = 0
    for i, m in enumerate(main):
        out.append(m)
        upto = len(extra) * (i + 1) // len(main)
        out += extra[k:upto]
        k = upto
    return out


NH, NO = 22, 8


def p2_common_setup(a, cls):
    a.I(f"v_lshlrev_b32 v{vO}, 4, v0")
    a.I(f"s_lshl_b32 s{sGr}, s{sROWQ}, 1")
    a.I(f"s_add_u32 s{sGr}, s{sGr}, s{sCOLH}")
    srd(a, dDbg, pDBG, pDBG + 1, 256)
    srd(a, dFL, pWS, pWS + 1, 32 * 256, add=FLB)
    if cls == 0:
        a.I(f"s_and_b32 s{sRB2}, s{sJ}, 3")
        a.I(f"s_lshr_b32 s{sCB}, s{sJ}, 2")
        a.I(f"s_mul_i32 s{sA}, s{sCB}, {OPT['rotc']}")
        a.I(f"s_mul_i32 s{sT}, s{sRB2}, {OPT['rotr']}")
        a.I(f"s_add_u32 s{sA}, s{sA}, s{sT}")
        for _ in range(1 + (7 * OPT['rotc'] + 3 * OPT['rotr']) // 44):
            a.I(f"s_sub_u32 s{sT}, s{sA}, 22")
            a.I(f"s_cmp_ge_u32 s{sA}, 22")
            a.I(f"s_cselect_b32 s{sA}, s{sT}, s{sA}")
        a.I(f"s_lshl_b32 s{sA}, s{sA}, 12")
        a.I(f"s_lshl_b32 s{sB}, s{sA}, 4")
        a.I(f"s_lshl_b32 s{sT}, s{sGr}, 2")
        a.I(f"s_add_u32 s{sRB2}, s{sRB2}, s{sT}")
        a.I(f"s_mul_i32 s{sM}, s{sWV}, {RING}")
        a.I(f"s_lshl_b32 s{sT}, s{sRB2}, 16")
        a.I(f"s_add_u32 s{sT}, s{sT}, {OB}")
        srd(a, dOf0, pWS, pWS + 1, 32 * 1024, add=f"s{sT}")
        a.I(f"s_add_u32 s{sT}, s{sT}, {32*1024}")
        srd(a, dOf1, pWS, pWS + 1, 32 * 1024, add=f"s{sT}")
    else:
        srd(a, dOf0, pWS, pWS + 1, 64 * 32 * 1024, add=OB)
        a.I(f"s_lshl_b32 s{sT}, s{sGr}, 3")
        a.I(f"s_lshl_b32 s{sT2}, s{sWV}, 1")
        a.I(f"s_add_u32 s{sT}, s{sT}, s{sT2}")
        a.I(f"s_sub_u32 s{sT}, s{sT}, 8")
        a.I(f"s_lshl_b32 s{sT}, s{sT}, 5")
        a.I(f"s_add_u32 s{sT}, s{sT}, s{sJ}")
        a.I(f"s_lshl_b32 s{sQ0}, s{sT}, 10")
        a.I(f"s_add_u32 s{sQ1}, s{sQ0}, 32768")


def w2_prefetch(a, vt, junk, vTID):
    srd(a, dW2, pW2, pW2 + 1, 1376 * 1024)
    srd(a, dWOd, pWO, pWO + 1, 512 * 1024)
    if not OPT["pfw2"]:
        return
    a.I(f"s_mul_i32 s{sT}, s{sJ}, 59")
    a.I(f"v_lshrrev_b32 v{vt}, 3, v{vTID}")
    a.I(f"v_min_u32 v{vt}, 58, v{vt}")
    a.I(f"v_add_u32 v{vt}, s{sT}, v{vt}")
    a.I(f"v_lshlrev_b32 v{vt}, 10, v{vt}")
    a.I(f"v_and_b32 v{vt+1}, 7, v{vTID}")
    a.I(f"v_lshl_add_u32 v{vt}, v{vt+1}, 7, v{vt}")
    a.I(f"v_subrev_u32 v{vt+1}, {1376*1024}, v{vt}")
    a.I(f"buffer_load_dword v{junk}, v{vt}, {S(dW2,4)}, 0 offen")
    a.I(f"buffer_load_dword v{junk+1}, v{vt+1}, {S(dWOd,4)}, 0 offen")


dKV, dQ, dPH = 24, 28, 32


def p2_late_setup(a, cls, t):
    if cls == 0:
        a.I(f"s_mul_i32 s{sT}, s{sRB2}, {2*86*1024}")
        srd(a, dH0, pWS, pWS + 1, 86 * 1024, add=f"s{sT}")
        a.I(f"s_add_u32 s{sT}, s{sT}, {86*1024}")
        srd(a, dH1, pWS, pWS + 1, 86 * 1024, add=f"s{sT}")
        a.I(f"v_lshrrev_b32 v{t[0]}, 3, v0")
        a.I(f"v_and_b32 v{t[1]}, 7, v0")
        a.I(f"v_and_b32 v{t[2]}, 2, v{t[0]}")
        a.I(f"v_lshlrev_b32 v{t[2]}, 1, v{t[2]}")
        a.I(f"v_xor_b32 v{t[2]}, v{t[2]}, v{t[1]}")
        a.I(f"v_lshlrev_b32 v{t[2]}, 4, v{t[2]}")
        a.I(f"v_lshl_add_u32 v{vDX}, v{t[0]}, 10, v{t[2]}")
        a.I(f"s_lshl_b32 s{sT}, s{sWV}, 14")
        a.I(f"s_lshl_b32 s{sT2}, s{sCB}, 7")
        a.I(f"s_add_u32 s{sT}, s{sT}, s{sT2}")
        a.I(f"v_add_u32 v{vDX}, s{sT}, v{vDX}")
        a.I(f"v_add_u32 v{vDW}, 8192, v{vDX}")
    else:
        srd(a, dKV, pWS, pWS + 1, 8 * 32 * 4096, add=KVB)
        srd(a, dQ, pWS, pWS + 1, 64 * 32 * 1024, add=QB)
        srd(a, dPH, pWPHI, pWPHI + 1, 32 * 512)


def issueB_parts(a, step):
    s = step % DB
    d = dW2 if step < NH else dWOd

    def f0():
        if step >= NH:
            a.I(f"s_mov_b32 s{sB}, {(step-NH)*65536}")
        a.I(f"s_add_u32 m0, s{sM}, {s*2048}")
        a.I(f"buffer_load_dwordx4 v{vDX}, {S(d,4)}, s{sB} offen lds")

    def f1():
        a.I(f"s_add_u32 m0, s{sM}, {s*2048+1024}")
        a.I(f"buffer_load_dwordx4 v{vDW}, {S(d,4)}, s{sB} offen lds")
        if step < NH - 1:
            a.I(f"s_add_u32 s{sB}, s{sB}, 65536")
            a.I(f"s_cmp_eq_u32 s{sB}, {NH*65536}")
            a.I(f"s_cselect_b32 s{sB}, 0, s{sB}")
    return [f0, f1]


def p2_gemm(a, early):
    P = f"p2_gemm{early}"
    DA = OPT["da"]
    OAT = OPT["oat"]
    RP = 272
    vL, vTID = 0, 1
    r = Regs(5, VLIM, "v")
    vA = r.alloc(); aB = [r.alloc(), r.alloc()]
    t = [r.alloc() for _ in range(8)]
    acc = [r.alloc(16, 4) for _ in range(4)]
    fa = [r.alloc(8, 4) for _ in range(DA)]
    fb = [[r.alloc(4, 4) for _ in range(2)] for _ in range(2)]
    xr = [r.alloc(4, 4) for _ in range(2)]
    a.L(P)
    stamp(a, 6)
    a.I(f"s_lshl_b32 s{sT}, s{sWV}, 10")
    a.I(f"v_min_u32 v{t[6]}, 39, v{vL}")
    a.I(f"v_lshlrev_b32 v{t[6]}, 2, v{t[6]}")
    a.I(f"s_lshl_b32 s{sT2}, s{sRB2}, 8")
    a.I(f"s_mov_b32 s{sCNT}, 0")
    probe = [f"buffer_load_dword v{t[4]}, v{t[6]}, {S(dFL,4)}, s{sT2} offen sc1"]
    emit(a, probe)
    PRE = max(OPT["pre"], early)
    for tb in range(early, PRE):
        emit(a, issueB_parts(a, tb))
    a.I(f"v_add_u32 v{vA}, s{sT}, v{vO}")
    a.I(f"v_lshrrev_b32 v{t[0]}, 5, v{vL}")
    a.I(f"v_bfe_u32 v{t[1]}, v{vL}, 2, 2")
    a.I(f"v_lshl_add_u32 v{t[0]}, v{t[0]}, 2, v{t[1]}")
    a.I(f"v_lshlrev_b32 v{t[0]}, 7, v{t[0]}")
    a.I(f"v_and_b32 v{t[2]}, 3, v{vL}")
    a.I(f"v_lshl_add_u32 v{t[0]}, v{t[2]}, 3, v{t[0]}")
    a.I(f"v_add_u32 v{t[0]}, s{sM}, v{t[0]}")
    a.I(f"v_bfe_u32 v{t[2]}, v{vL}, 4, 1")
    a.I(f"v_and_b32 v{t[1]}, 2, v{t[1]}")
    a.I(f"v_or_b32 v{t[2]}, v{t[2]}, v{t[1]}")
    a.I(f"v_lshl_add_u32 v{aB[0]}, v{t[2]}, 5, v{t[0]}")
    a.I(f"v_xor_b32 v{t[2]}, 2, v{t[2]}")
    a.I(f"v_lshl_add_u32 v{aB[1]}, v{t[2]}, 5, v{t[0]}")
    a.I(f"s_waitcnt vmcnt({2*(PRE-early)})")
    a.L(f"{P}_pr")
    a.I(f"v_cmp_ne_u32 vcc, 1, v{t[4]}")
    a.I(f"s_cbranch_vccz {P}_go")
    a.I(f"s_add_u32 s{sCNT}, s{sCNT}, 1")
    a.I(f"s_cmp_gt_u32 s{sCNT}, 0x8000")
    a.I(f"s_cbranch_scc1 {P}_go")
    a.I("s_sleep 2")
    emit(a, probe)
    a.I("s_waitcnt vmcnt(0)")
    a.I(f"s_branch {P}_pr")
    a.L(f"{P}_go")
    stamp(a, 7)
    vm = [("B", tb) for tb in range(early, PRE) for _ in range(2)]

    def loadsA(step, so):
        s = step % DA
        d0, d1 = (dH0, dH1) if step < NH else (dOf0, dOf1)
        return [f"buffer_load_dwordx4 {V(fa[s],4)}, v{vA}, {S(d0,4)}, s{so} offen sc1",
                f"buffer_load_dwordx4 {V(fa[s]+4,4)}, v{vA}, {S(d1,4)}, s{so} offen sc1"]

    def issueA(step):
        if step < NH:
            emit(a, loadsA(step, sA))
            a.I(f"s_add_u32 s{sA}, s{sA}, 4096")
            a.I(f"s_cmp_eq_u32 s{sA}, {NH*4096}")
            a.I(f"s_cselect_b32 s{sA}, 0, s{sA}")
        else:
            a.I(f"s_mov_b32 s{sAo}, {(step-NH)*4096}")
            emit(a, loadsA(step, sAo))
        vm.extend([("A", step)] * 2)

    def issueB(step):
        emit(a, issueB_parts(a, step))
        vm.extend([("B", step)] * 2)

    def wait_for(tags):
        hit = [i for i, tg in enumerate(vm) if tg in tags]
        if not hit:
            return
        idx = max(hit)
        a.I(f"s_waitcnt vmcnt({min(63, len(vm) - 1 - idx)})")
        del vm[:idx + 1]

    def readsB(step):
        s = step % DB
        f = fb[step & 1]
        for ct in range(2):
            a.I(f"ds_read_b64_tr_b16 {V(f[ct],2)}, v{aB[ct]} offset:{s*2048}")
            a.I(f"ds_read_b64_tr_b16 {V(f[ct]+2,2)}, v{aB[ct]} offset:{s*2048+1024}")

    a.I(f"s_mov_b32 s{sG}, s{sA}")
    NS = NH + NO
    nextA = 0; nextB = PRE
    while nextA < DA or nextB < min(DB, DA + 2):
        if nextB < min(DB, DA + 2) and nextB <= nextA + 1 or nextA >= DA:
            issueB(nextB); nextB += 1
        else:
            issueA(nextA); nextA += 1
    retries = []
    wait_for({("B", 0)})
    readsB(0)
    for st in range(NS):
        if st == OAT:
            stamp(a, 8)
            while nextA < NS and nextA < st + DA:
                issueA(nextA); nextA += 1
        if st + 1 < NS:
            wait_for({("B", st + 1), ("A", st)})
            a.I("s_waitcnt lgkmcnt(0)")
            readsB(st + 1)
        else:
            wait_for({("A", st)})
            a.I("s_waitcnt lgkmcnt(0)")
        s = st % DA
        f = fb[st & 1]
        if st == NH:
            stamp(a, 9)
        if st >= NH:
            chk = sentinel_check(fa[s], t[4], t[5]) + [f"v_cmp_eq_u32 vcc, -1, v{t[4]}"]
            emit(a, chk)
            a.I(f"s_cbranch_vccnz {P}_retry{st}")
            a.L(f"{P}_back{st}")
            retries.append((st, chk))
        for rt in range(2):
            for ct in range(2):
                c_ = acc[2 * rt + ct]
                cc = "0" if st == 0 else V(c_, 16)
                a.I(f"{MFMA} {V(c_,16)}, {V(f[ct],4)}, {V(fa[s]+4*rt,4)}, {cc}")
        if nextA < NS and (nextA < NH or st >= OAT) and nextA <= st + DA:
            issueA(nextA); nextA += 1
        for _ in range(2):
            if nextB < NS and nextB <= st + DB:
                issueB(nextB); nextB += 1
        if st == NS - 10:
            a.I(f"s_lshl_b32 s{sT}, s{sRB2}, 16")
            srd(a, dXr, pX, pX + 1, 65536, add=f"s{sT}")
            srd(a, dOut, pOUT, pOUT + 1, 65536, add=f"s{sT}")
            a.I(f"v_lshrrev_b32 v{t[0]}, 3, v{vTID}")
            a.I(f"v_and_b32 v{t[1]}, 7, v{vTID}")
            a.I(f"v_lshlrev_b32 v{t[2]}, 10, v{t[0]}")
            a.I(f"v_lshl_add_u32 v{t[2]}, v{t[1]}, 4, v{t[2]}")
            a.I(f"s_lshl_b32 s{sT}, s{sCB}, 7")
            a.I(f"v_add_u32 v{t[2]}, s{sT}, v{t[2]}")
            a.I(f"v_add_u32 v{t[3]}, 32768, v{t[2]}")
            a.I(f"buffer_load_dwordx4 {V(xr[0],4)}, v{t[2]}, {S(dXr,4)}, 0 offen")
            a.I(f"buffer_load_dwordx4 {V(xr[1],4)}, v{t[3]}, {S(dXr,4)}, 0 offen")
            vm.extend([("X", 0)] * 2)
    assert nextA == NS and nextB == NS
    stamp(a, 10)
    assert 64 * RP <= RING
    a.I(f"v_and_b32 v{aB[0]}, 31, v{vL}")
    a.I(f"v_mul_u32_u24 v{aB[0]}, {RP}, v{aB[0]}")
    a.I(f"v_lshrrev_b32 v{aB[1]}, 5, v{vL}")
    a.I(f"v_lshl_add_u32 v{aB[0]}, v{aB[1]}, 4, v{aB[0]}")
    a.I(f"v_add_u32 v{aB[0]}, s{sM}, v{aB[0]}")
    a.I(f"v_mul_u32_u24 v{aB[1]}, {RP}, v{t[0]}")
    a.I(f"v_lshl_add_u32 v{aB[1]}, v{t[1]}, 5, v{aB[1]}")
    a.I(f"v_add_u32 v{vA}, {2*RING}, v{aB[1]}")
    for rt in range(2):
        for ct in range(2):
            for q in range(4):
                a.I(f"ds_write_b128 v{aB[0]}, {V(acc[2*rt+ct]+4*q,4)} offset:{rt*32*RP + ct*128 + q*32}")
    a.I("s_waitcnt lgkmcnt(0)")
    a.I("s_barrier")
    Rr = acc[0]
    for hf in range(2):
        for w in range(4):
            for p in range(2):
                a.I(f"ds_read_b128 {V(Rr + hf*32 + w*8 + p*4, 4)}, v{aB[1] if w < 2 else vA} offset:{(w&1)*RING + hf*32*RP + p*16}")
    a.I("s_waitcnt vmcnt(0)")
    for hf in range(2):
        a.I(f"s_waitcnt lgkmcnt({8*(1-hf)})")
        b = Rr + hf * 32
        for i in range(8):
            a.I(f"v_add_f32 v{b+i}, v{b+i}, v{b+8+i}")
            a.I(f"v_add_f32 v{b+16+i}, v{b+16+i}, v{b+24+i}")
        for i in range(4):
            a.I(f"v_lshlrev_b32 v{b+8+2*i}, 16, v{xr[hf]+i}")
            a.I(f"v_and_b32 v{b+8+2*i+1}, 0xffff0000, v{xr[hf]+i}")
        for i in range(8):
            a.I(f"v_add_f32 v{b+i}, v{b+i}, v{b+16+i}")
        for i in range(8):
            a.I(f"v_add_f32 v{b+i}, v{b+i}, v{b+8+i}")
        pack8(a, b + 16, b)
        a.I(f"buffer_store_dwordx4 {V(b+16,4)}, v{t[2+hf]}, {S(dOut,4)}, 0 offen")
    stamp_out(a)
    a.I("s_endpgm")
    for (st, chk) in retries:
        a.L(f"{P}_retry{st}")
        a.I(f"s_mov_b32 s{sCNT}, 0")
        if st < NH:
            a.I(f"s_add_u32 s{sT2}, s{sG}, {st*4096}")
            a.I(f"s_sub_u32 s{sT3}, s{sT2}, {NH*4096}")
            a.I(f"s_cmp_ge_u32 s{sT2}, {NH*4096}")
            a.I(f"s_cselect_b32 s{sT2}, s{sT3}, s{sT2}")
        else:
            a.I(f"s_mov_b32 s{sT2}, {(st-NH)*4096}")
        a.L(f"{P}_rl{st}")
        a.I("s_sleep 2")
        emit(a, loadsA(st, sT2))
        a.I("s_waitcnt vmcnt(0)")
        emit(a, chk)
        a.I(f"s_add_u32 s{sCNT}, s{sCNT}, 1")
        a.I(f"s_cmp_gt_u32 s{sCNT}, 0x8000")
        a.I(f"s_cbranch_scc1 {P}_back{st}")
        a.I(f"s_cbranch_vccnz {P}_rl{st}")
        a.I(f"s_branch {P}_back{st}")


def p2_prod(a):
    vL = 0
    a.L("p2_prod")
    stamp(a, 6)
    a.I("s_setprio 3")
    r = Regs(5, VLIM, "v")
    t = [r.alloc() for _ in range(8)]
    vK = r.alloc(); aP = r.alloc(); sgn = r.alloc(); aKW = r.alloc()
    KP = [r.alloc(16, 4) for _ in range(4)]
    QF = r.alloc(8, 4)
    WP = r.alloc(4, 4)
    D = [r.alloc(16, 4) for _ in range(2)]
    O = [r.alloc(16, 4) for _ in range(2)]
    T4 = [r.alloc(4) for _ in range(2)]
    sPW, sK0, sK1 = sRH, sCQ, sROT
    a.I(f"s_sub_u32 s{sPW}, s{sWV}, 4")
    a.I(f"s_lshl_b32 s{sM}, s{sPW}, 10")
    a.I(f"s_add_u32 s{sM}, s{sM}, {L_PH}")
    a.I(f"s_lshl_b32 s{sT}, s{sJ}, 9")
    a.I(f"s_mov_b32 m0, s{sM}")
    qloads = [f"buffer_load_dwordx4 {V(QF,4)}, v{vO}, {S(dQ,4)}, s{sQ0} offen sc1",
              f"buffer_load_dwordx4 {V(QF+4,4)}, v{vO}, {S(dQ,4)}, s{sQ1} offen sc1"]
    a.I(f"buffer_load_dwordx4 v{vO}, {S(dPH,4)}, s{sT} offen lds")
    a.I(f"s_lshl_b32 s{sT2}, s{sGr}, 2")
    a.I(f"s_add_u32 s{sT2}, s{sT2}, s{sPW}")
    a.I(f"s_lshl_b32 s{sT2}, s{sT2}, 8")
    a.I(f"s_lshr_b32 s{sT}, s{sJ}, 4")
    a.I(f"s_lshl_b32 s{sT}, s{sT}, 4")
    a.I(f"s_add_u32 s{sT2}, s{sT2}, s{sT}")
    a.I(f"v_and_b32 v{t[7]}, 3, v{vL}")
    a.I(f"v_lshlrev_b32 v{t[7]}, 2, v{t[7]}")
    qprobe = f"buffer_load_dword v{t[6]}, v{t[7]}, {S(dFL,4)}, s{sT2} offen offset:192 sc1"
    a.I(qprobe)
    a.I(f"v_and_b32 v{t[0]}, 31, v{vL}")
    a.I(f"v_min_u32 v{t[0]}, 16, v{t[0]}")
    a.I(f"v_and_b32 v{t[1]}, 32, v{vL}")
    a.I(f"v_add_u32 v{t[0]}, v{t[0]}, v{t[1]}")
    a.I(f"v_lshlrev_b32 v{vK}, 4, v{t[0]}")
    a.I(f"s_lshl_b32 s{sK0}, s{sPW}, 6")
    a.I(f"s_add_u32 s{sK0}, s{sK0}, s{sJ}")
    a.I(f"s_lshl_b32 s{sK0}, s{sK0}, 12")
    a.I(f"s_add_u32 s{sK1}, s{sK0}, {32*4096}")
    kloads = [f"buffer_load_dwordx4 {V(KP[p]+4*q,4)}, v{vK}, {S(dKV,4)}, s{so} offen offset:{q*1024} sc1"
              for p, so in ((0, sK0), (1, sK1)) for q in range(4)]
    a.I(f"v_mov_b32 v{t[2]}, {L_CNT}")
    a.I(f"v_mov_b32 v{t[3]}, 1")
    a.I(f"v_lshrrev_b32 v{t[4]}, 5, v{vL}")
    a.I(f"v_bfe_u32 v{t[5]}, v{vL}, 2, 2")
    a.I(f"v_lshl_add_u32 v{aP}, v{t[4]}, 2, v{t[5]}")
    a.I(f"v_lshlrev_b32 v{aP}, 5, v{aP}")
    a.I(f"v_and_b32 v{t[5]}, 3, v{vL}")
    a.I(f"v_lshl_add_u32 v{aP}, v{t[5]}, 3, v{aP}")
    a.I(f"v_add_u32 v{aP}, s{sM}, v{aP}")
    a.I(f"v_bfe_u32 v{t[5]}, v{vL}, 4, 1")
    a.I(f"v_mul_u32_u24 v{sgn}, 0x8000, v{t[5]}")
    a.I(f"v_lshl_or_b32 v{sgn}, v{sgn}, 16, v{sgn}")
    a.I(f"s_lshl_b32 s{sT}, s{sPW}, 12")
    a.I(f"s_add_u32 s{sT}, s{sT}, {L_KV}")
    a.I(f"v_add_u32 v{aKW}, s{sT}, v{vO}")

    def until_ready(name, loads, groups):
        a.I(f"s_mov_b32 s{sCNT}, 0")
        a.L(f"{name}_chk")
        a.I("s_waitcnt vmcnt(0)")
        for n, g in enumerate(groups):
            emit(a, sentinel_check(g, t[6] if n else t[4], t[5]))
            if n:
                a.I(f"v_max_u32 v{t[4]}, v{t[4]}, v{t[6]}")
        a.I(f"v_cmp_eq_u32 vcc, -1, v{t[4]}")
        a.I(f"s_cbranch_vccz {name}_ok")
        a.I(f"s_add_u32 s{sCNT}, s{sCNT}, 1")
        a.I(f"s_cmp_gt_u32 s{sCNT}, 0x8000")
        a.I(f"s_cbranch_scc1 {name}_ok")
        a.I("s_sleep 6")
        emit(a, loads)
        a.I(f"s_branch {name}_chk")
        a.L(f"{name}_ok")
    a.I(f"s_mov_b32 s{sCNT}, 0")
    a.L("p2q_chk")
    a.I("s_waitcnt vmcnt(0)")
    a.I(f"v_cmp_ne_u32 vcc, 1, v{t[6]}")
    a.I("s_cbranch_vccz p2q_ok")
    a.I(f"s_add_u32 s{sCNT}, s{sCNT}, 1")
    a.I(f"s_cmp_gt_u32 s{sCNT}, 0x8000")
    a.I("s_cbranch_scc1 p2q_ok")
    a.I("s_sleep 4")
    a.I(qprobe)
    a.I("s_branch p2q_chk")
    a.L("p2q_ok")
    emit(a, qloads)
    a.I("s_waitcnt vmcnt(0)")
    stamp(a, 7)
    a.I(f"ds_read_b64_tr_b16 {V(WP,2)}, v{aP}")
    a.I(f"ds_read_b64_tr_b16 {V(WP+2,2)}, v{aP} offset:256")
    a.I("s_waitcnt lgkmcnt(0)")
    for i in range(4):
        a.I(f"v_xor_b32 v{WP+i}, v{WP+i}, v{sgn}")
    for rt in range(2):
        a.I(f"{MFMA} {V(D[rt],16)}, {V(WP,4)}, {V(QF+4*rt,4)}, 0")
    sm = zipl(*[softmax_pm(D[rt], T4[rt], sL2E) + pack8l(D[rt], D[rt]) + pack8l(D[rt] + 4, D[rt] + 8) for rt in range(2)])
    emit(a, sm[:len(sm) // 2])
    emit(a, kloads)
    emit(a, sm[len(sm) // 2:])
    stamp(a, 8)
    until_ready("p2k", kloads, [KP[0], KP[0] + 8, KP[1], KP[1] + 8])
    stamp(a, 9)
    for i in range(16):
        a.I(f"v_add_f32 v{KP[0]+i}, v{KP[0]+i}, v{KP[1]+i}")
    for q in range(4):
        a.I(f"ds_write_b128 v{aKW}, {V(KP[0]+4*q,4)} offset:{q*1024}")
    a.I(f"v_add_u32 v{aKW}, {L_KV}, v{vO}")
    a.I("s_waitcnt lgkmcnt(0)")
    a.I("s_mov_b64 exec, 1")
    a.I(f"ds_add_u32 v{t[2]}, v{t[3]}")
    a.I("s_mov_b64 exec, -1")
    a.I(f"s_mov_b32 s{sCNT}, 0")
    a.L("p2_pc")
    a.I(f"ds_read_b32 v{t[4]}, v{t[2]}")
    a.I("s_waitcnt lgkmcnt(0)")
    a.I(f"v_readfirstlane_b32 s{sT}, v{t[4]}")
    a.I(f"s_add_u32 s{sCNT}, s{sCNT}, 1")
    a.I(f"s_cmp_gt_u32 s{sCNT}, 0x100000")
    a.I("s_cbranch_scc1 p2_pc_done")
    a.I(f"s_cmp_lt_u32 s{sT}, 4")
    a.I("s_cbranch_scc1 p2_pc")
    a.L("p2_pc_done")
    for p in range(4):
        for q in range(4):
            a.I(f"ds_read_b128 {V(KP[p]+4*q,4)}, v{aKW} offset:{p*4096+q*1024}")
    a.I("s_waitcnt lgkmcnt(8)")
    for i in range(16):
        a.I(f"v_add_f32 v{KP[0]+i}, v{KP[0]+i}, v{KP[1]+i}")
    a.I("s_waitcnt lgkmcnt(0)")
    for i in range(16):
        a.I(f"v_add_f32 v{KP[2]+i}, v{KP[2]+i}, v{KP[3]+i}")
    for i in range(16):
        a.I(f"v_add_f32 v{KP[0]+i}, v{KP[0]+i}, v{KP[2]+i}")
    pack8(a, KP[1], KP[0])
    pack8(a, KP[1] + 4, KP[0] + 8)
    for rt in range(2):
        a.I(f"{MFMA} {V(O[rt],16)}, {V(KP[1],4)}, {V(D[rt],4)}, 0")
    for rt in range(2):
        a.I(f"{MFMA} {V(O[rt],16)}, {V(KP[1]+4,4)}, {V(D[rt]+4,4)}, {V(O[rt],16)}")
    for rt in range(2):
        o = O[rt]
        a.I(f"v_add_f32 v{o+8}, 0x358637bd, v{o+8}")
        a.I(f"v_rcp_f32 v{o+8}, v{o+8}")
        for i in range(8):
            a.I(f"v_mul_f32 v{o+i}, v{o+i}, v{o+8}")
        pack8(a, o + 12, o)
        a.I(f"buffer_store_dwordx4 {V(o+12,4)}, v{vO}, {S(dOf0,4)}, s{sQ0 if rt == 0 else sQ1} offen sc1")
    stamp(a, 10)
    stamp_out(a)
    a.I("s_endpgm")


def gen():
    a = Asm()
    a.I("s_cmp_ge_u32 s2, 256")
    a.I("s_cbranch_scc1 k_end")
    if OPT["stamp"]:
        a.I(f"v_mov_b32 v{vST}, 0")
    stamp(a, 0)
    a.I("s_load_dwordx4 s[4:7], s[0:1], 0")
    a.I("s_load_dwordx4 s[12:15], s[0:1], 40")
    a.I("s_load_dwordx4 s[8:11], s[0:1], 16")
    a.I("s_load_dwordx4 s[16:19], s[0:1], 56")
    a.I("s_load_dwordx4 s[20:23], s[0:1], 72")
    a.I("v_mov_b32 v1, v0")
    a.I("v_lshrrev_b32 v2, 6, v0")
    a.I("v_and_b32 v0, 63, v0")
    a.I(f"v_readfirstlane_b32 s{sWV}, v2")
    a.I(f"s_lshr_b32 s{sJ}, s2, 3")
    a.I(f"s_and_b32 s{sROWQ}, s2, 3")
    a.I(f"s_bfe_u32 s{sCOLH}, s2, 0x10002")
    a.I(f"s_cmp_lt_u32 s{sJ}, 20")
    a.I("s_cbranch_scc1 k1_ffn")
    a.I(f"s_cmp_lt_u32 s{sJ}, 28")
    a.I("s_cbranch_scc1 k1_kv")
    k1_type(a, "q")
    a.L("k_end")
    a.I("s_endpgm")
    k1_type(a, "kv")
    k1_type(a, "ffn")
    a.L("p2_start")
    p2_prod(a)
    p2_gemm(a, OPT["early"])
    return a


def main(out):
    ref = open(f"cdna_kernels/{NAME}.s.ref").read().split("\n")
    head = [l for l in ref if l.startswith(";") and "@launch" not in l and "Override" not in l and "grid=ceil" not in l]
    k = gen()
    n = k.fix_hazards("-v" in sys.argv)
    txt = "\n".join(head) + "\n"
    txt += f"; @launch grid=(256,1,1) block=(512,1,1) lds={LDS_TOTAL}\n"
    txt += '.amdgcn_target "amdgcn-amd-amdhsa--gfx950"\n.text\n'
    txt += f".globl {KN}\n.p2align 8\n.type {KN},@function\n{KN}:\n" + k.text()
    txt += ".fill 8192, 4, 0xbf810000\n"
    txt += f""".section .rodata,"a"
.p2align 6
.amdhsa_kernel {KN}
  .amdhsa_next_free_vgpr 256
  .amdhsa_next_free_sgpr 102
  .amdhsa_accum_offset 256
  .amdhsa_group_segment_fixed_size 0
  .amdhsa_kernarg_size 88
  .amdhsa_user_sgpr_count 2
  .amdhsa_user_sgpr_kernarg_segment_ptr 1
  .amdhsa_system_sgpr_workgroup_id_x 1
.end_amdhsa_kernel
"""
    open(out, "w").write(txt)
    print(f"written {out}: hazard pads {n}")


if __name__ == "__main__":
    out = [x for x in sys.argv[1:] if not x.startswith("-")]
    main(out[0] if out else f"cdna_kernels/{NAME}.s")
```

```python
import sys, os
sys.path.insert(0, os.path.dirname(os.path.abspath(__file__)))
from asm import Asm, Regs, V, S

NAME = "parallel_sum__linear_kernel_hedgehog__glu_gated_swiglu__prompt"
KN = NAME + "_kernel"

HB = 0
QB = 0x600000
KVB = 0x800000
OB = 0x900000
FLB = 0xB00000
STB = 0xC00000
LOG2E = 0x3fb8aa3b
RS1 = 2752
RSQ = 3072
MFMA = "v_mfma_f32_32x32x16_bf16"
M16 = "v_mfma_f32_16x16x32_bf16"
OPT = dict(stamp="--stamp" in sys.argv, nodot="--nodot" in sys.argv, nodma="--nodma" in sys.argv,
           nomfma="--nomfma" in sys.argv, nolds="--nolds" in sys.argv,
           da=12, oat=18, stagger=1, pfw2=0, rotc=3, rotr=0, e1=1, e2=1, pre=15, fillch=3, slp=4, slpk=6, perm=0, pfc=3, cpf=1)
for _x in sys.argv:
    if _x.startswith("--") and "=" in _x:
        _k, _v = _x[2:].split("=")
        OPT[_k] = int(_v)
STF = " sc1"
PMASK = [[0]*8, [0,0,1,1,3,3,3,3], [1]*8, [3]*8, [0,0,1,1,1,1,1,1], [1,1,1,1,3,3,3,3], [7]*8][OPT["perm"]]

RGN = [(114944, 4), (0, 6), (53376, 5)]
DB = sum(n for _, n in RGN)
L_KV = 94336
L_PH = 147712
L_SC = 153536
L_CNT = 163776


def slot_rgn(s):
    for i, (b, n) in enumerate(RGN):
        if s < n:
            return i, s * 2048
        s -= n


LDS_TOTAL = 163840
assert L_PH + 4096 <= L_SC and L_SC + 10240 <= L_CNT and L_KV + 16384 <= RGN[0][0] and RGN[2][0] + 4 * 5 * 2048 <= L_KV

pX, pWQKV, pWPHI, pWO, pW1, pW3, pW2, pOUT, pDBG, pWS = 4, 6, 8, 10, 12, 14, 16, 18, 20, 22
dX, dWA, dWB, dWE, dO0, dO1, dOf0, dOf1, dFL, dDbg = 24, 28, 32, 36, 40, 44, 48, 52, 56, 64
dXr, dOut = dO0, dO1
dH0, dH1, dW2, dWOd = dX, dWA, dWB, dWE

sWV, sJ, sROWQ, sCOLH, sRB, sG, sRH, sCQ, sROT, sDST = 68, 69, 70, 71, 72, 73, 74, 75, 76, 77
sT, sT2, sT3, sELDS, sL2E, sRT0, sRT1, sTI = 78, 79, 80, 81, 82, 83, 84, 85
sMASK = 100
sO = [88, 89, 90, 91]
sGr, sRB2, sCB, sA, sB, sM, sCNT, sAo = 92, 93, 94, 95, 96, 97, 98, 99
sMR = [sM, 60, 61]
sQ0, sQ1 = sA, sB
sPF, sXO, sWOc = 62, 63, 87
sFL = 3
sWO = sO[3]
vDX, vDW, vO = 2, 3, 4
vST = 255
VLIM = 255


def stamp(a, i):
    if OPT["stamp"]:
        a.I(f"{'s_memtime' if '--cyc' in sys.argv else 's_memrealtime'} s[100:101]")
        a.I("s_waitcnt lgkmcnt(0)")
        a.I(f"v_writelane_b32 v{vST}, s100, {i}")


def stamp_out(a):
    if not OPT["stamp"]:
        return
    a.I("s_waitcnt vmcnt(0)")
    stamp(a, 15)
    srd(a, dDbg, pWS, pWS + 1, 256 * 8 * 64, add=STB)
    a.I(f"s_lshl_b32 s{sT}, s2, 3")
    a.I(f"s_add_u32 s{sT}, s{sT}, s{sWV}")
    a.I(f"s_lshl_b32 s{sT}, s{sT}, 6")
    a.I("v_lshlrev_b32 v254, 2, v0")
    a.I("s_mov_b64 exec, 0xffff")
    a.I(f"buffer_store_dword v{vST}, v254, {S(dDbg,4)}, s{sT} offen")
    a.I("s_mov_b64 exec, -1")


def code_prefetch(a, vtmp, vjunk, ranges, vtid):
    if not OPT["cpf"]:
        return
    a.I(f"v_lshlrev_b32 v{vtmp}, 4, v{vtid}")
    for (lab, nbytes) in ranges:
        here = f"pc{len(a.items)}"
        a.I("s_getpc_b64 s[96:97]")
        a.L(here)
        if lab is not None:
            a.I(f"s_add_u32 s96, s96, {lab}-{here}")
            a.I(f"s_addc_u32 s97, s97, 0")
        for i in range((nbytes + 8191) // 8192):
            a.I(f"global_load_dwordx4 {V(vjunk,4)}, v{vtmp}, s[96:97]")
            if (i + 1) * 8192 < nbytes:
                a.I("s_add_u32 s96, s96, 8192")
                a.I("s_addc_u32 s97, s97, 0")


def sentinel_check(regs, t0, t1):
    z = regs
    return [f"v_max3_u32 v{t0}, v{z}, v{z+1}, v{z+2}", f"v_max3_u32 v{t1}, v{z+3}, v{z+4}, v{z+5}",
            f"v_max3_u32 v{t0}, v{z+6}, v{z+7}, v{t0}", f"v_max_u32 v{t0}, v{t0}, v{t1}"]


def interleave(a, main, fill):
    n = len(main)
    k = 0
    for i, m in enumerate(main):
        a.I(m)
        upto = (len(fill) * (i + 1) + n - 1) // n if i < n - 1 else len(fill)
        while k < upto:
            f = fill[k]
            if callable(f):
                f()
            else:
                a.I(f)
            k += 1


def srd(a, d, lo, hi, size, add=None):
    if add is None:
        a.I(f"s_mov_b32 s{d}, s{lo}")
        a.I(f"s_and_b32 s{d+1}, s{hi}, 0xffff")
    else:
        a.I(f"s_add_u32 s{d}, s{lo}, {add}")
        a.I(f"s_addc_u32 s{d+1}, s{hi}, 0")
        a.I(f"s_and_b32 s{d+1}, s{d+1}, 0xffff")
    a.I(f"s_mov_b32 s{d+2}, {size}")
    a.I(f"s_mov_b32 s{d+3}, 0x20000")


def softmax_pm(D, T, sL, post=None):
    t0, t1, t2, t3 = T, T + 1, T + 2, T + 3
    L = []
    A = L.append
    A(f"v_max3_f32 v{t0}, v{D}, v{D+1}, v{D+2}")
    A(f"v_max3_f32 v{t1}, v{D+8}, v{D+9}, v{D+10}")
    A(f"v_max3_f32 v{t2}, v{D+3}, v{D+4}, v{D+5}")
    A(f"v_max3_f32 v{t3}, v{D+11}, v{D+12}, v{D+13}")
    A(f"v_max3_f32 v{t0}, v{D+6}, v{D+7}, v{t0}")
    A(f"v_max3_f32 v{t1}, v{D+14}, v{D+15}, v{t1}")
    A(f"v_max_f32 v{t0}, v{t0}, v{t2}")
    A(f"v_max_f32 v{t1}, v{t1}, v{t3}")
    A(f"v_permlane32_swap_b32 v{t0}, v{t1}")
    A(f"v_max_f32 v{t0}, v{t0}, v{t1}")
    A(f"v_mul_f32 v{t0}, {sL}, v{t0}")
    A(f"v_mov_b32 v{t1}, v{t0}")
    A(f"v_permlane32_swap_b32 v{t0}, v{t1}")
    for i in range(16):
        A(f"v_fma_f32 v{D+i}, v{D+i}, {sL}, -v{t0 if i < 8 else t1}")
    for i in range(16):
        A(f"v_exp_f32 v{D+i}, v{D+i}")
    A(f"v_add_f32 v{t0}, v{D}, v{D+1}")
    A(f"v_add_f32 v{t1}, v{D+8}, v{D+9}")
    A(f"v_add_f32 v{t2}, v{D+2}, v{D+3}")
    A(f"v_add_f32 v{t3}, v{D+10}, v{D+11}")
    for i in (4, 6):
        A(f"v_add_f32 v{t0}, v{t0}, v{D+i}")
        A(f"v_add_f32 v{t1}, v{t1}, v{D+8+i}")
        A(f"v_add_f32 v{t2}, v{t2}, v{D+i+1}")
        A(f"v_add_f32 v{t3}, v{t3}, v{D+8+i+1}")
    A(f"v_add_f32 v{t0}, v{t0}, v{t2}")
    A(f"v_add_f32 v{t1}, v{t1}, v{t3}")
    A(f"v_permlane32_swap_b32 v{t0}, v{t1}")
    A(f"v_add_f32 v{t0}, v{t0}, v{t1}")
    A(f"v_rcp_f32 v{t0}, v{t0}")
    if post is not None:
        A(f"v_mul_f32 v{t0}, v{t0}, v{post}")
    A(f"v_mov_b32 v{t1}, v{t0}")
    A(f"v_permlane32_swap_b32 v{t0}, v{t1}")
    for i in range(16):
        A(f"v_mul_f32 v{D+i}, v{D+i}, v{t0 if i < 8 else t1}")
    return L


def zipl(*lists):
    out = []
    n = max(len(l) for l in lists)
    for i in range(n):
        for l in lists:
            if i < len(l):
                out.append(l[i])
    return out


def emit(a, L):
    for f in L:
        if callable(f):
            f()
        else:
            a.I(f)


def pack8l(dst, src):
    return [f"v_cvt_pk_bf16_f32 v{dst+i}, v{src+2*i}, v{src+2*i+1}" for i in range(4)]


def pack8(a, dst, src):
    for i in range(4):
        a.I(f"v_cvt_pk_bf16_f32 v{dst+i}, v{src+2*i}, v{src+2*i+1}")


def k1_type(a, kind):
    ffn = kind == "ffn"
    P = f"k1_{kind}"
    XI = 4 if kind == "kv" else 2
    SLOT = 53376 if ffn else 49152
    WOFF = 32768 if kind == "kv" else 16384
    UOFF = 18432 + 128
    RSW = RS1 if ffn else RSQ
    r = Regs(5, VLIM, "v")
    vL = 0
    vTID = 1
    acc = [r.alloc(16, 4) for _ in range(5 if ffn else 4)]
    setbase = r.mark()
    fx = []; fw = []
    for _ in range(4):
        fx.append([r.alloc(4, 4) for _ in range(2)])
        fw.append([r.alloc(4, 4) for _ in range(3 if ffn else 2)])
    cs = [r.alloc(4, 4) for _ in range(3 if ffn else 2)]
    sel = r.alloc(4, 4)
    junk = r.alloc(4, 4)
    ones4 = r.alloc(4, 4) if not ffn else None
    adr = [[r.alloc(4, 4) for _ in range(4 if ffn else 2)] for _ in range(2)]
    st = [[r.alloc() for _ in range(4)] for _ in range(2)]
    vDE = r.alloc()
    t = [r.alloc() for _ in range(8)]
    u = [r.alloc() for _ in range(4)]
    vHM = r.alloc()
    vZ = r.alloc()
    vLO = r.alloc()
    kvr = [r.alloc() for _ in range(5)] + [r.alloc(4, 4) for _ in range(2)] if kind == "kv" else None
    if ffn:
        Mop = [adr[1][0], adr[1][1]]
        ex = [adr[1][2] + i for i in range(4)] + [adr[1][3] + i for i in range(4)]
    else:
        Mop = [r.alloc(4, 4) for _ in range(2)]
        ex = [r.alloc() for _ in range(8)]
    CR = cs
    if ffn:
        ones4 = r.alloc(4, 4)

    a.L(P)
    code_prefetch(a, t[0], junk, [(None, 24576), ("p2_start", 24576)], vTID)
    if ffn:
        a.I(f"s_and_b32 s{sT}, s{sJ}, 3")
        a.I(f"s_lshl_b32 s{sRB}, s{sROWQ}, 2")
        a.I(f"s_add_u32 s{sRB}, s{sRB}, s{sT}")
        a.I(f"s_lshr_b32 s{sT}, s{sJ}, 2")
        a.I(f"s_mul_i32 s{sG}, s{sCOLH}, 5")
        a.I(f"s_add_u32 s{sG}, s{sG}, s{sT}")
        a.I(f"s_lshl_b32 s{sT2}, s{sRB}, 17")
        a.I(f"s_mul_i32 s{sWO}, s{sG}, 288")
    elif kind == "kv":
        a.I(f"s_sub_u32 s{sT}, s{sJ}, 20")
        a.I(f"s_and_b32 s{sT2}, s{sT}, 1")
        a.I(f"s_lshl_b32 s{sRB}, s{sROWQ}, 1")
        a.I(f"s_add_u32 s{sRB}, s{sRB}, s{sT2}")
        a.I(f"s_lshr_b32 s{sT}, s{sT}, 1")
        a.I(f"s_lshl_b32 s{sG}, s{sCOLH}, 2")
        a.I(f"s_add_u32 s{sG}, s{sG}, s{sT}")
        a.I(f"s_lshl_b32 s{sT2}, s{sRB}, 18")
        a.I(f"s_lshl_b32 s{sWO}, s{sG}, 7")
        a.I(f"s_add_u32 s{sWO}, s{sWO}, 1024")
    else:
        a.I(f"s_sub_u32 s{sT}, s{sJ}, 28")
        a.I(f"s_lshl_b32 s{sRB}, s{sROWQ}, 2")
        a.I(f"s_add_u32 s{sRB}, s{sRB}, s{sT}")
        a.I(f"s_mov_b32 s{sG}, s{sCOLH}")
        a.I(f"s_lshl_b32 s{sT2}, s{sRB}, 17")
        a.I(f"s_lshl_b32 s{sWO}, s{sCOLH}, 9")
    a.I(f"s_lshr_b32 s{sPF}, s{sJ}, 2")
    a.I(f"s_add_u32 s{sPF}, s{sPF}, s{sJ}")
    a.I(f"s_and_b32 s{sRH}, s{sWV}, 1")
    a.I(f"v_lshrrev_b32 v{t[0]}, 3, v{vL}")
    a.I(f"v_and_b32 v{t[1]}, 7, v{vL}")
    a.I(f"s_lshl_b32 s{sT}, s{sWV}, 3")
    a.I(f"v_add_u32 v{t[2]}, s{sT}, v{t[0]}")
    a.I(f"v_bfe_u32 v{t[3]}, v{t[2]}, 1, 3")
    a.I(f"v_xor_b32 v{t[3]}, v{t[3]}, v{t[1]}")
    a.I(f"v_lshlrev_b32 v{t[3]}, 4, v{t[3]}")
    a.I(f"v_lshl_add_u32 v{vDX}, v{t[2]}, 10, v{t[3]}")
    if ffn:
        a.I(f"s_mov_b32 s{sT3}, {RS1}")
        a.I(f"s_mov_b32 s{sT}, 3641")
        for (dst, pat) in ((vDW, None), (vDE, 8)):
            if pat is None:
                src = vTID
            else:
                a.I(f"v_add_u32 v{t[4]}, 512, v{vL}")
                src = t[4]
            a.I(f"v_mul_u32_u24 v{t[5]}, s{sT}, v{src}")
            a.I(f"v_lshrrev_b32 v{t[5]}, 16, v{t[5]}")
            a.I(f"v_mul_u32_u24 v{t[6]}, 18, v{t[5]}")
            a.I(f"v_sub_u32 v{t[6]}, v{src}, v{t[6]}")
            a.I(f"v_lshlrev_b32 v{t[6]}, 4, v{t[6]}")
            a.I(f"v_mad_u32_u24 v{dst}, v{t[5]}, s{sT3}, v{t[6]}")
        a.I(f"v_add_u32 v{vDW}, s{sWO}, v{vDW}")
        a.I(f"s_mul_i32 s{sT}, s{sRH}, {32*RS1}")
        a.I(f"s_add_u32 s{sT}, s{sT}, s{sWO}")
        a.I(f"v_add_u32 v{vDE}, s{sT}, v{vDE}")
    else:
        a.I(f"v_and_b32 v{t[3]}, 2, v{t[0]}")
        a.I(f"v_lshlrev_b32 v{t[3]}, 1, v{t[3]}")
        a.I(f"v_xor_b32 v{t[3]}, v{t[3]}, v{t[1]}")
        a.I(f"v_lshlrev_b32 v{t[3]}, 4, v{t[3]}")
        a.I(f"s_mov_b32 s{sT3}, {RSQ}")
        a.I(f"v_mad_u32_u24 v{vDW}, v{t[2]}, s{sT3}, v{t[3]}")
        a.I(f"v_add_u32 v{vDW}, s{sWO}, v{vDW}")
    a.I(f"s_lshl_b32 s{sDST}, s{sWV}, 10")
    if ffn:
        a.I(f"s_mul_i32 s{sT}, s{sRH}, 9216")
        a.I(f"s_bitcmp1_b32 s{sWV}, 1")
        a.I(f"s_cselect_b32 s{sELDS}, {UOFF}, 0")
        a.I(f"s_add_u32 s{sELDS}, s{sELDS}, {WOFF + 8192}")
        a.I(f"s_add_u32 s{sELDS}, s{sELDS}, s{sT}")
    a.I("s_waitcnt lgkmcnt(0)")
    srd(a, dX, pX, pX + 1, (256 if kind == "kv" else 128) * 1024, add=f"s{sT2}")
    if ffn:
        srd(a, dWA, pW1, pW1 + 1, 512 * RS1)
        srd(a, dWB, pW3, pW3 + 1, 512 * RS1)
        a.I(f"s_bitcmp1_b32 s{sWV}, 1")
        a.I(f"s_cselect_b32 s{dWE}, s{dWB}, s{dWA}")
        a.I(f"s_cselect_b32 s{dWE+1}, s{dWB+1}, s{dWA+1}")
        a.I(f"s_mov_b32 s{dWE+2}, {512*RS1}")
        a.I(f"s_mov_b32 s{dWE+3}, 0x20000")
    else:
        srd(a, dWA, pWQKV, pWQKV + 1, 512 * RSQ)

    vm = []

    def vmwait(c):
        idx = max([i for i, tg in enumerate(vm) if tg == c], default=-1)
        n = len(vm) - 1 - idx
        del vm[:idx + 1]
        return n

    def dma_list(cls, c):
        so = (c % 3) * SLOT
        L = []
        for i in range(XI):
            L.append((sDST, so + 8192 * i, (sXO, 65536 * i), f"buffer_load_dwordx4 v{vDX}, {S(dX,4)}, %s offen lds"))
        if ffn:
            for (d, off) in ((dWA, 0), (dWB, UOFF)):
                for hi in range(2):
                    L.append((sDST, so + WOFF + off + 9216 * hi, (sWOc, 32 * RS1 * hi), f"buffer_load_dwordx4 v{vDW}, {S(d,4)}, %s offen lds"))
            if cls == 1:
                L.append((sELDS, so, (sWOc, 0), f"buffer_load_dwordx4 v{vDE}, {S(dWE,4)}, %s offen lds"))
        else:
            for rg in range(4 if kind == "q" else 2):
                g = 128 * rg if kind == "q" else 1024 * rg
                L.append((sDST, so + WOFF + 8192 * rg, (sWOc, g), f"buffer_load_dwordx4 v{vDW}, {S(dWA,4)}, %s offen lds"))
        out = []
        for n, (sb, m0c, goff, ins) in enumerate(L):
            def f(sb=sb, m0c=m0c, goff=goff, ins=ins, n=n):
                if n == 0:
                    a.I(f"s_and_b32 s{sT}, s{sPF}, {PMASK[c]}")
                    a.I(f"s_xor_b32 s{sT}, s{sT}, {c}")
                    a.I(f"s_lshl_b32 s{sXO}, s{sT}, 7")
                    a.I(f"s_mul_i32 s{sWOc}, s{sT}, {64*RSW}")
                a.I(f"s_add_u32 m0, s{sb}, {m0c}")
                a.I(f"s_add_u32 s{sT}, s{goff[0]}, {goff[1]}")
                a.I(ins % f"s{sT}")
                vm.append(c)
            out.append(f)
        return [] if OPT["nodma"] and c >= 2 else out

    classes = (0, 1)
    a.I(f"s_cmp_ge_u32 s{sWV}, 4")
    a.I(f"s_cbranch_scc1 {P}_c1")
    for cls in classes:
        C = f"{P}_c{cls}"
        a.L(C)
        del vm[:]
        extra = ffn and cls == 0
        NT = 3 if extra else 2
        emit(a, dma_list(cls, 0))
        if kind == "kv":
            srd(a, dWE, pWPHI, pWPHI + 1, 32 * 512)
            a.I(f"s_lshl_b32 s{sT}, s{sG}, 11")
            a.I(f"s_lshl_b32 s{sT2}, s{sRH}, 10")
            a.I(f"s_add_u32 s{sT}, s{sT}, s{sT2}")
            a.I(f"v_lshlrev_b32 v{vDE}, 4, v{vL}")
            a.I(f"s_add_u32 m0, s{sDST}, {3*SLOT}")
            a.I(f"buffer_load_dwordx4 v{vDE}, {S(dWE,4)}, s{sT} offen lds")
            vm.append("phi")
        a.I(f"s_lshr_b32 s{sCQ}, s{sWV}, 1")
        a.I(f"s_lshl_b32 s{sROT}, s{sRH}, 1")
        a.I(f"s_add_u32 s{sROT}, s{sROT}, s{sCQ}")
        a.I(f"s_and_b32 s{sROT}, s{sROT}, 3")
        a.I(f"v_and_b32 v{t[0]}, 31, v{vL}")
        a.I(f"v_lshrrev_b32 v{t[1]}, 5, v{vL}")
        a.I(f"v_bfe_u32 v{t[2]}, v{vL}, 1, 3")
        if kind == "kv":
            a.I(f"s_lshl_b32 s{sRT0}, s{sCQ}, 1")
            a.I(f"s_add_u32 s{sRT1}, s{sRT0}, 1")
        elif kind == "q":
            a.I(f"s_lshl_b32 s{sRT0}, s{sRH}, 1")
            a.I(f"s_add_u32 s{sRT1}, s{sRT0}, 1")
        else:
            a.I(f"s_and_b32 s{sT}, s{sCQ}, 1")
            a.I(f"s_lshl_b32 s{sRT0}, s{sRH}, 1")
            a.I(f"s_add_u32 s{sRT0}, s{sRT0}, s{sT}")
            a.I(f"s_xor_b32 s{sRT1}, s{sRT0}, 1")
        a.I(f"v_bfe_u32 v{t[4]}, v{vL}, 2, 2")
        a.I(f"v_lshl_add_u32 v{t[4]}, v{t[1]}, 3, v{t[4]}")
        a.I(f"v_and_b32 v{t[5]}, 3, v{vL}")
        a.I(f"v_lshlrev_b32 v{t[5]}, 3, v{t[5]}")
        a.I(f"v_bfe_u32 v{t[6]}, v{vL}, 4, 1")
        if ffn:
            a.I(f"s_mov_b32 s{sT3}, {UOFF}")
            a.I(f"v_mad_u32_u24 v{t[5]}, v{t[6]}, s{sT3}, v{t[5]}")
            a.I(f"v_mul_u32_u24 v{t[4]}, 288, v{t[4]}")
            a.I(f"v_add_u32 v{t[5]}, v{t[5]}, v{t[4]}")
            PITCH = 288
        else:
            if kind == "kv":
                a.I(f"s_lshl_b32 s{sT}, s{sRH}, 1")
            else:
                a.I(f"s_and_b32 s{sT}, s{sCQ}, 1")
                a.I(f"s_lshl_b32 s{sT}, s{sT}, 1")
            a.I(f"v_add_u32 v{t[6]}, s{sT}, v{t[6]}")
            a.I(f"v_and_b32 v{t[7]}, 2, v{t[4]}")
            a.I(f"v_xor_b32 v{t[6]}, v{t[6]}, v{t[7]}")
            a.I(f"v_lshl_add_u32 v{t[5]}, v{t[6]}, 5, v{t[5]}")
            a.I(f"v_lshl_add_u32 v{t[5]}, v{t[4]}, 7, v{t[5]}")
            PITCH = 128
        if ffn:
            a.I(f"s_lshl_b32 s{sT3}, s{sCQ}, 6")
            a.I(f"s_add_u32 s{sT3}, s{sT3}, {WOFF}")
        elif kind == "q":
            a.I(f"s_lshr_b32 s{sT3}, s{sCQ}, 1")
            a.I(f"s_lshl_b32 s{sT3}, s{sT3}, 14")
            a.I(f"s_add_u32 s{sT3}, s{sT3}, {WOFF}")
        else:
            a.I(f"s_mov_b32 s{sT3}, {WOFF}")
        for j in range(4):
            a.I(f"s_add_u32 s{sT}, s{sROT}, {j}")
            a.I(f"s_and_b32 s{sT}, s{sT}, 3")
            a.I(f"s_lshl_b32 s{sT2}, s{sT}, 1")
            a.I(f"v_add_u32 v{t[3]}, s{sT2}, v{t[1]}")
            a.I(f"v_xor_b32 v{t[3]}, v{t[3]}, v{t[2]}")
            a.I(f"v_lshlrev_b32 v{t[3]}, 4, v{t[3]}")
            a.I(f"v_lshl_add_u32 v{t[3]}, v{t[0]}, 7, v{t[3]}")
            a.I(f"s_lshl_b32 s{sT2}, s{sRT0}, 12")
            a.I(f"v_add_u32 v{adr[0][0]+j}, s{sT2}, v{t[3]}")
            if ffn:
                a.I(f"s_lshl_b32 s{sT2}, s{sRT1}, 12")
                a.I(f"v_add_u32 v{adr[0][2]+j}, s{sT2}, v{t[3]}")
            a.I(f"s_mul_i32 s{sT}, s{sT}, {16*PITCH}")
            a.I(f"s_add_u32 s{sT2}, s{sT}, s{sT3}")
            a.I(f"v_add_u32 v{adr[0][1]+j}, s{sT2}, v{t[5]}")
            if extra:
                a.I(f"s_add_u32 s{sT2}, s{sT}, {WOFF + 256}")
                a.I(f"v_add_u32 v{adr[0][3]+j}, s{sT2}, v{t[5]}")
        for k in range(len(adr[0]) if extra or not ffn else 3):
            for j in range(4):
                a.I(f"v_add_u32 v{adr[1][k]+j}, {2*SLOT}, v{adr[0][k]+j}")
        emit(a, dma_list(cls, 1))
        if kind == "kv":
            kv_addr(a, kvr, t, vL, SLOT)
        a.I(f"v_lshrrev_b32 v{t[0]}, 4, v{vL}")
        a.I(f"v_xor_b32 v{t[0]}, v{t[0]}, v{vL}")
        a.I(f"v_and_b32 v{t[0]}, 1, v{t[0]}")
        a.I(f"v_add_u32 v{t[0]}, -1, v{t[0]}")
        for i in range(4):
            a.I(f"v_and_b32 v{sel+i}, 0x3f803f80, v{t[0]}")
        for x in st[0] + st[1]:
            a.I(f"v_mov_b32 v{x}, 0")
        a.I(f"v_mov_b32 v{vHM}, 0xffff0000")
        a.I(f"v_lshrrev_b32 v{vLO}, 5, v{vL}")
        a.I(f"v_add_u32 v{vLO}, -1, v{vLO}")
        a.I(f"s_mov_b32 s{sL2E}, {LOG2E}")
        T1 = 32 if ffn else 8192
        H2 = 4 * PITCH
        NR = 8 if extra else 6

        def reads(c, j):
            if OPT["nolds"]:
                return []
            b = adr[1 if c % 3 == 2 else 0]
            o = SLOT if c % 3 == 1 else 0
            L = []
            L.append(f"ds_read_b128 {V(fx[j][0],4)}, v{b[0]+j} offset:{o}")
            L.append(f"ds_read_b64_tr_b16 {V(fw[j][0],2)}, v{b[1]+j} offset:{o}")
            L.append(f"ds_read_b64_tr_b16 {V(fw[j][0]+2,2)}, v{b[1]+j} offset:{o+H2}")
            L.append(f"ds_read_b64_tr_b16 {V(fw[j][1],2)}, v{b[1]+j} offset:{o+T1}")
            L.append(f"ds_read_b64_tr_b16 {V(fw[j][1]+2,2)}, v{b[1]+j} offset:{o+T1+H2}")
            if ffn:
                L.append(f"ds_read_b128 {V(fx[j][1],4)}, v{b[2]+j} offset:{o}")
            else:
                L.append(f"ds_read_b128 {V(fx[j][1],4)}, v{b[0]+j} offset:{o+4096}")
            if extra:
                L.append(f"ds_read_b64_tr_b16 {V(fw[j][2],2)}, v{b[3]+j} offset:{o}")
                L.append(f"ds_read_b64_tr_b16 {V(fw[j][2]+2,2)}, v{b[3]+j} offset:{o+H2}")
            return L

        tiles = [(0, 0), (0, 1), (1, 0), (1, 1)] + ([(0, 2)] if extra else [])

        def m1(j, n, first=False):
            rt, tl = tiles[n]
            return f"{MFMA} {V(acc[n],16)}, {V(fw[j][tl],4)}, {V(fx[j][rt],4)}, {'0' if first else V(acc[n],16)}"

        def cs16(c, j):
            if OPT["nodot"]:
                return []
            if kind == "kv":
                tls = (0, 1) if j == 0 else ()
            else:
                tls = {0: (0, 1, 2) if extra else (0, 1), 1: (0, 1)}.get(j, ())
            return [f"{M16} {V(cs[tl],4)}, {V(fw[j][tl],4)}, {V(sel,4)}, {'0' if (c == 0 and j == 0) else V(cs[tl],4)}" for tl in tls]

        def mf(c, j, with_cs=True):
            if OPT["nomfma"]:
                return ["s_nop 0"] * 4
            L = [m1(j, n, first=(c == 0 and j == 0)) for n in range(len(tiles))]
            if with_cs:
                for i, x in enumerate(cs16(c, j)):
                    L.insert(2 * i + 1, x)
            return L

        def xstats(j):
            L = []
            for i in range(4):
                for rt in range(2):
                    lo, hi = u[2 * rt], u[2 * rt + 1]
                    L.append(f"v_lshlrev_b32 v{lo}, 16, v{fx[j][rt]+i}")
                    L.append(f"v_and_b32 v{hi}, v{vHM}, v{fx[j][rt]+i}")
                for rt in range(2):
                    lo, hi = u[2 * rt], u[2 * rt + 1]
                    L.append(f"v_add_f32 v{st[rt][0]}, v{st[rt][0]}, v{lo}")
                    L.append(f"v_add_f32 v{st[rt][1]}, v{st[rt][1]}, v{hi}")
                    L.append(f"v_fmac_f32 v{st[rt][2]}, v{lo}, v{lo}")
                    L.append(f"v_fmac_f32 v{st[rt][3]}, v{hi}, v{hi}")
            return [] if OPT["nodot"] else L

        SC = L_SC
        CS = SC + (8192 if kind == "kv" else 4096)
        slot_x = sRH if kind == "kv" else sCQ
        slot_c = sCQ if kind == "kv" else sRH
        TD = 1 if ffn else 2

        def exaddr():
            a.I(f"v_and_b32 v{t[0]}, 31, v{vL}")
            a.I(f"v_lshrrev_b32 v{t[1]}, 5, v{vL}")
            a.I(f"v_lshlrev_b32 v{t[2]}, 5, v{t[0]}")
            a.I(f"v_lshlrev_b32 v{t[3]}, 2, v{t[1]}")
            a.I(f"s_lshl_b32 s{sT}, s{slot_x}, 3")
            for rt, srt in ((0, sRT0), (1, sRT1)):
                a.I(f"s_lshl_b32 s{sT2}, s{srt}, 10")
                a.I(f"s_add_u32 s{sT2}, s{sT2}, {SC}")
                a.I(f"v_add_u32 v{ex[rt]}, s{sT2}, v{t[2]}")
                a.I(f"v_add3_u32 v{ex[2+rt]}, v{ex[rt]}, v{t[3]}, s{sT}")
            if ffn:
                a.I(f"s_lshl_b32 s{sTI}, s{sCQ}, 1")
            elif kind == "q":
                a.I(f"s_lshr_b32 s{sTI}, s{sCQ}, 1")
                a.I(f"s_lshl_b32 s{sTI}, s{sTI}, 2")
                a.I(f"s_and_b32 s{sT2}, s{sCQ}, 1")
                a.I(f"s_add_u32 s{sTI}, s{sTI}, s{sT2}")
            else:
                a.I(f"s_mov_b32 s{sTI}, s{sRH}")
            a.I(f"s_lshl_b32 s{sT2}, s{sTI}, 9")
            a.I(f"s_add_u32 s{sT2}, s{sT2}, {CS}")
            a.I(f"v_lshlrev_b32 v{t[4]}, 2, v{t[0]}")
            a.I(f"v_add_u32 v{ex[4]}, s{sT2}, v{t[4]}")
            a.I(f"v_and_b32 v{t[5]}, 1, v{vL}")
            a.I(f"v_lshlrev_b32 v{t[5]}, 6, v{t[5]}")
            a.I(f"v_lshrrev_b32 v{t[6]}, 4, v{vL}")
            a.I(f"v_lshl_add_u32 v{t[5]}, v{t[6]}, 4, v{t[5]}")
            a.I(f"s_lshl_b32 s{sT}, s{slot_c}, 7")
            a.I(f"s_add_u32 s{sT2}, s{sT2}, s{sT}")
            a.I(f"v_add_u32 v{ex[5]}, s{sT2}, v{t[5]}")
            if extra:
                a.I(f"v_add_u32 v{ex[6]}, {CS + 8*512}, v{t[4]}")
                a.I(f"s_lshl_b32 s{sT2}, s{sROT}, 7")
                a.I(f"s_add_u32 s{sT2}, s{sT2}, {CS + 8*512}")
                a.I(f"v_add_u32 v{ex[7]}, s{sT2}, v{t[5]}")

        def outsetup():
            if ffn:
                for rt, srt, d in ((0, sRT0, dO0), (1, sRT1, dO1)):
                    a.I(f"s_lshl_b32 s{sT}, s{sRB}, 2")
                    a.I(f"s_add_u32 s{sT}, s{sT}, s{srt}")
                    a.I(f"s_mul_i32 s{sT}, s{sT}, {86*1024}")
                    srd(a, d, pWS, pWS + 1, 86 * 1024, add=f"s{sT}")
                a.I(f"s_mul_i32 s{sO[1]}, s{sG}, {9*1024}")
                a.I(f"s_lshl_b32 s{sO[0]}, s{sCQ}, 11")
                a.I(f"s_add_u32 s{sO[0]}, s{sO[0]}, s{sO[1]}")
                a.I(f"s_add_u32 s{sO[1]}, s{sO[1]}, {8*1024}")
            elif kind == "q":
                srd(a, dO0, pWS, pWS + 1, 64 * 32 * 1024, add=QB)
                a.I(f"s_lshl_b32 s{sT3}, s{sTI}, 1")
                a.I(f"s_lshl_b32 s{sT}, s{sCOLH}, 4")
                a.I(f"s_add_u32 s{sT3}, s{sT3}, s{sT}")
                for srt, so in ((sRT0, sO[0]), (sRT1, sO[2])):
                    a.I(f"s_lshl_b32 s{sT}, s{sRB}, 2")
                    a.I(f"s_add_u32 s{sT}, s{sT}, s{srt}")
                    a.I(f"s_lshl_b32 s{sT}, s{sT}, 5")
                    a.I(f"s_add_u32 s{sT}, s{sT}, s{sT3}")
                    a.I(f"s_lshl_b32 s{so}, s{sT}, 10")
                a.I(f"s_add_u32 s{sO[1]}, s{sO[0]}, 4096")
                a.I(f"s_add_u32 s{sO[3]}, s{sO[2]}, 4096")
            else:
                srd(a, dO0, pWS, pWS + 1, 8 * 32 * 4096, add=KVB)
                a.I(f"s_lshl_b32 s{sT}, s{sRB}, 5")
                a.I(f"s_lshl_b32 s{sT3}, s{sG}, 2")
                a.I(f"s_add_u32 s{sT}, s{sT}, s{sT3}")
                a.I(f"s_lshl_b32 s{sT3}, s{sRH}, 1")
                a.I(f"s_add_u32 s{sT}, s{sT}, s{sT3}")
                a.I(f"s_lshl_b32 s{sT}, s{sT}, 12")
                a.I(f"s_lshl_b32 s{sT2}, s{sCQ}, 10")
                a.I(f"s_add_u32 s{sO[0]}, s{sT}, s{sT2}")
                a.I(f"s_add_u32 s{sO[1]}, s{sO[0]}, 4096")

        def capture(fn):
            n0 = len(a.items)
            fn()
            L = [it.text for it in a.items[n0:]]
            del a.items[n0:]
            return L

        if not ffn:
            exaddr()
        outsetup()
        p2_common_setup(a, cls)
        F_ = ones4
        for i in range(4):
            a.I(f"v_mov_b32 v{F_+i}, -1")
        fills = []
        if kind == "kv":
            fills = [(dO0, sO[0], 0), (dO0, sO[1], 0)]
        if cls == 1:
            fills += [(dOf0, sQ0, 0), (dOf0, sQ1, 0)]
        fq = []
        for (d, so, o) in fills:
            def ff(d=d, so=so, o=o):
                a.I(f"buffer_store_dwordx4 {V(F_,4)}, v{vO}, {S(d,4)}, s{so} offen offset:{o}{STF}")
                vm.append("fill")
            fq.append(ff)
        if kind != "kv":
            a.I(f"s_lshl_b32 s{sFL}, s{sRB}, 1")
            a.I(f"s_add_u32 s{sFL}, s{sFL}, s{sRH}")
            a.I(f"s_lshl_b32 s{sFL}, s{sFL}, 6")
            a.I(f"s_lshl_b32 s{sT}, s{sG}, 2")
            a.I(f"s_add_u32 s{sFL}, s{sFL}, s{sT}")
            a.I(f"s_add_u32 s{sFL}, s{sFL}, s{sCQ}")
            if kind == "q":
                a.I(f"s_add_u32 s{sFL}, s{sFL}, 48")
            a.I(f"s_lshl_b32 s{sFL}, s{sFL}, 2")
            a.I(f"v_mov_b32 v{vZ}, 0")

            def fz():
                a.I("s_mov_b64 exec, 1")
                a.I(f"buffer_store_dword v{vZ}, v{vZ}, {S(dFL,4)}, s{sFL} offen sc1")
                a.I("s_mov_b64 exec, -1")
                vm.append("fill")
            fq.insert(0, fz)
        FPC = (len(fq) + OPT["fillch"] - 1) // OPT["fillch"]
        a.I(f"v_mov_b32 v{t[0]}, {L_CNT}")
        a.I(f"v_mov_b32 v{t[1]}, 0")
        a.I(f"ds_write_b32 v{t[0]}, v{t[1]}")
        a.I(f"ds_write_b32 v{t[0]}, v{t[1]} offset:4")
        stamp(a, 1)
        carry = []
        late = OPT["stagger"] and cls == 1
        E1 = RGN[0][1] if (cls == 0 and OPT["e1"]) else 0
        E2 = E1 + (RGN[1][1] if (cls == 0 and kind != "kv" and OPT["e2"]) else 0)

        def earlyB(lo, hi):
            L = []
            for tb in range(lo, hi):
                for f in issueB_parts(a, tb):
                    L.append(lambda f=f: (f(), vm.append("eb")))
            return L
        for c in range(7):
            a.I(f"s_waitcnt vmcnt({vmwait(c)}) lgkmcnt(0)")
            if c == 0:
                stamp(a, 2)
            if c == OPT["fillch"] + 2:
                assert "fill" not in vm
            a.I("s_barrier")
            if c == OPT["fillch"] + 2 and cls == 0:
                assert "fill" not in vm
                a.I(f"s_lshl_b32 s{sT}, s{sWV}, 12")
                a.I(f"v_mov_b32 v{t[0]}, 0")
                a.I(f"v_mov_b32 v{t[1]}, 1")
                a.I("s_mov_b64 exec, 1")
                a.I(f"buffer_atomic_add v{t[1]}, v{t[0]}, {S(dDbg,4)}, s{sT} offen")
                a.I("s_mov_b64 exec, -1")
                vm.append("atomic")
            dm = dma_list(cls, c + 2) if c + 2 < 8 else []
            x0 = xstats(0)
            if kind == "kv":
                x1 = xstats(1)
                pA, pB, pC, pD = carry, x0[:12], x0[12:36], x0[36:] + x1[:16]
                carry = x1[16:]
                if c == 6:
                    pD = x0[36:] + x1; carry = []
            else:
                pA, pB, pC, pD = [], x0[:12], x0[12:32], x0[32:]
            xtraB = []; xtraD = []
            if c < OPT["fillch"]:
                xtraD = fq[c * FPC:(c + 1) * FPC]
            if c == 5:
                L = capture(lambda: w2_prefetch(a, t[1], junk, vTID))
                npf = sum(1 for x in L if x.startswith("buffer"))
                xtraD = L + [lambda npf=npf: vm.extend(["pf"] * npf)] + capture(lambda: p2_late_setup(a, cls, t))
            if c == 6:
                xtraB = capture(exaddr) if ffn else []
                dm = earlyB(0, E1)
            if c == OPT["pfc"] and cls == 1 and OPT["pfw2"]:
                assert OPT["rotr"] == 0
                xtraB = capture(lambda: w2_l2_prefetch(a, t[1], junk)) + [lambda: vm.append("pf")]
            if c == 1 and kind == "kv":
                for hd in range(2):
                    xtraD.append(f"ds_read_b64_tr_b16 {V(kvr[5+hd],2)}, v{kvr[3]} offset:{512*hd}")
                    xtraD.append(f"ds_read_b64_tr_b16 {V(kvr[5+hd]+2,2)}, v{kvr[3]} offset:{512*hd+256}")
            dA, dC = ([], dm) if (late and c) else (dm, [])
            if c == 0:
                emit(a, reads(c, 0) + dm + reads(c, 1))
                a.I(f"s_waitcnt lgkmcnt({NR})")
                emit(a, pB)
            else:
                interleave(a, mf(c - 1, 2), zipl(reads(c, 0), pA, dA))
                g = mf(c - 1, 3)
                h = (len(g) + 1) // 2
                interleave(a, g[:h], reads(c, 1) + xtraB)
                a.I(f"s_waitcnt lgkmcnt({NR})")
                interleave(a, g[h:], pB)
            interleave(a, mf(c, 0), zipl(reads(c, 2), pC, dC))
            a.I(f"s_waitcnt lgkmcnt({NR})")
            interleave(a, mf(c, 1), reads(c, 3) + (spread(pD, xtraD) if c < 5 and pD else pD + xtraD))
        stamp(a, 3)
        a.I(f"s_waitcnt vmcnt({vmwait(7)}) lgkmcnt(0)")
        a.I("s_barrier")
        pre = reads(7, 0) + reads(7, 1)
        eb2 = earlyB(E1, E2)
        g = mf(6, 2)
        a.I(g[0])
        emit(a, pre)
        interleave(a, g[1:], eb2[:6])
        a.I("s_waitcnt lgkmcnt(0)")
        g = mf(6, 3)
        cl = cs16(7, 0) + cs16(7, 1)
        g = cl + g if not OPT["nomfma"] else g
        interleave(a, g, spread(zipl(reads(7, 2), xstats(0) + (xstats(1) if kind == "kv" else [])), eb2[6:]))
        emit(a, reads(7, 3))
        f3 = []
        for rt in range(2):
            f3.append(f"v_add_f32 v{st[rt][0]}, v{st[rt][0]}, v{st[rt][1]}")
            f3.append(f"v_add_f32 v{st[rt][2]}, v{st[rt][2]}, v{st[rt][3]}")
        for tl in range(2):
            f3.append(f"ds_write_b128 v{ex[5]}, {V(cs[tl],4)} offset:{512*TD*tl}")
        if extra:
            f3.append(f"ds_write_b128 v{ex[7]}, {V(cs[2],4)}")
        for rt in range(2):
            f3.append(f"v_permlane32_swap_b32 v{st[rt][0]}, v{st[rt][2]}")
        for rt in range(2):
            f3.append(f"v_add_f32 v{st[rt][0]}, v{st[rt][0]}, v{st[rt][2]}")
        for rt in range(2):
            f3.append(f"ds_write_b32 v{ex[2+rt]}, v{st[rt][0]}")
        g0 = mf(7, 0, with_cs=False)
        interleave(a, g0[:2], f3)
        emit(a, g0[2:])
        a.I("s_waitcnt lgkmcnt(0)")
        a.I("s_barrier")
        R = [fx[0][0], fx[0][1], fw[0][0], fw[0][1]]
        for rt in range(2):
            a.I(f"ds_read_b128 {V(R[2*rt],4)}, v{ex[rt]}")
            if kind != "kv":
                a.I(f"ds_read_b128 {V(R[2*rt+1],4)}, v{ex[rt]} offset:16")
        for tl in range(NT):
            ns = 4 if (kind == "kv" or tl == 2) else 2
            for sl in range(ns):
                if tl < 2:
                    a.I(f"ds_read_b32 v{CR[tl]+sl}, v{ex[4]} offset:{512*TD*tl + 128*sl}")
                else:
                    a.I(f"ds_read_b32 v{CR[tl]+sl}, v{ex[6]} offset:{128*sl}")
        vCN = u[0]
        a.I(f"v_mov_b32 v{u[1]}, 0")
        a.I(f"buffer_load_dword v{vCN}, v{u[1]}, {S(dDbg,4)}, 0 offen sc1")
        mark = len(a.items)
        eb = []
        f4 = []
        if kind == "kv":
            pass
        interleave(a, mf(7, 1, with_cs=False), f4)
        a.I("s_waitcnt lgkmcnt(0)")
        rstd = [st[0][0], st[1][0]]
        ir2 = [st[0][1], st[1][1]]
        rl = [st[0][2], st[1][2]]
        ml = []
        for rt in range(2):
            A_, B_ = R[2 * rt], R[2 * rt + 1]
            M = Mop[rt]
            L = []
            L.append(f"v_add_f32 v{A_}, v{A_}, v{A_+2}")
            L.append(f"v_add_f32 v{A_+1}, v{A_+1}, v{A_+3}")
            if kind != "kv":
                L.append(f"v_add_f32 v{B_}, v{B_}, v{B_+2}")
                L.append(f"v_add_f32 v{B_+1}, v{B_+1}, v{B_+3}")
                L.append(f"v_add_f32 v{A_}, v{A_}, v{B_}")
                L.append(f"v_add_f32 v{A_+1}, v{A_+1}, v{B_+1}")
            L.append(f"v_mul_f32 v{A_}, 0xbb000000, v{A_}")
            L.append(f"v_mul_f32 v{A_+1}, 0x3b000000, v{A_+1}")
            L.append(f"v_cvt_pk_bf16_f32 v{M}, v{A_}, v{A_}")
            L.append(f"v_fma_f32 v{A_+1}, -v{A_}, v{A_}, v{A_+1}")
            L.append(f"v_and_b32 v{A_+2}, v{vHM}, v{M}")
            L.append(f"v_max_f32 v{A_+1}, 0, v{A_+1}")
            L.append(f"v_sub_f32 v{A_+2}, v{A_}, v{A_+2}")
            L.append(f"v_add_f32 v{ir2[rt]}, 0x3727c5ac, v{A_+1}")
            L.append(f"v_cvt_pk_bf16_f32 v{M+1}, v{A_+2}, 0")
            L.append(f"v_rsq_f32 v{rstd[rt]}, v{ir2[rt]}")
            L.append(f"v_and_b32 v{M}, v{M}, v{vLO}")
            L.append(f"v_and_b32 v{M+1}, v{M+1}, v{vLO}")
            L.append(f"v_mov_b32 v{M+2}, 0")
            L.append(f"v_mov_b32 v{M+3}, 0")
            if ffn:
                L.append(f"v_mul_f32 v{rl[rt]}, 0xbfb8aa3b, v{rstd[rt]}")
            if kind == "kv":
                L.append(f"v_mul_f32 v{rl[rt]}, 0x3fb8aa3b, v{rstd[rt]}")
                L.append(f"v_mul_f32 v{ir2[rt]}, v{ir2[rt]}, v{rstd[rt]}")
            ml.append(L)
        for n in range(NT):
            c_ = CR[n]
            L = []
            L.append(f"v_add_f32 v{c_}, v{c_}, v{c_+1}")
            if kind == "kv" or n == 2:
                L.append(f"v_add_f32 v{c_+2}, v{c_+2}, v{c_+3}")
                L.append(f"v_add_f32 v{c_}, v{c_}, v{c_+2}")
            L.append(f"v_cvt_pk_bf16_f32 v{c_+1}, v{c_}, v{c_}")
            L.append(f"v_and_b32 v{c_+1}, v{vHM}, v{c_+1}")
            L.append(f"v_sub_f32 v{c_+1}, v{c_}, v{c_+1}")
            L.append(f"v_cvt_pk_bf16_f32 v{c_}, v{c_}, v{c_+1}")
            L.append(f"v_mov_b32 v{c_+1}, v{c_}")
            L.append(f"v_mov_b32 v{c_+2}, 0")
            L.append(f"v_mov_b32 v{c_+3}, 0")
            ml.append(L)
        interleave(a, mf(7, 2), zipl(*ml))
        stamp(a, 4)

        def fin(n):
            rt, tl = tiles[n]
            return [m1(3, n), f"{MFMA} {V(acc[n],16)}, {V(CR[tl],4)}, {V(Mop[rt],4)}, {V(acc[n],16)}"]

        if ffn:
            EB = [fx[1][0], fx[2][0]]
            assert fx[1][1] == fx[1][0] + 4 and fx[2][1] == fx[2][0] + 4
            dst = [(dO0, sO[0], 0), (dO0, sO[0], 1024), (dO1, sO[0], 0), (dO1, sO[0], 1024), (dO0, sO[1], 0)]

            def epi(n):
                c_ = acc[n]; rt = tiles[n][0]; E = EB[n & 1]
                d, so, off = dst[n]
                L = []
                L += [f"v_mul_f32 v{E+i}, v{c_+i}, v{rl[rt]}" for i in range(8)]
                L += [f"v_exp_f32 v{E+i}, v{E+i}" for i in range(8)]
                L += [f"v_mul_f32 v{c_+i}, v{c_+i}, v{c_+8+i}" for i in range(8)]
                L += [f"v_fma_f32 v{E+i}, v{E+i}, v{ir2[rt]}, v{ir2[rt]}" for i in range(8)]
                L += [f"v_rcp_f32 v{E+i}, v{E+i}" for i in range(8)]
                L += [f"v_mul_f32 v{c_+i}, v{c_+i}, v{E+i}" for i in range(8)]
                L += pack8l(c_ + 8, c_)
                L.append(f"buffer_store_dwordx4 {V(c_+8,4)}, v{vO}, {S(d,4)}, s{so} offen offset:{off}{STF}")
                return L
        elif kind == "q":
            so_ = sO

            def epi(n):
                c_ = acc[n]; rt = tiles[n][0]
                L = [f"v_mul_f32 v{c_+i}, v{c_+i}, v{rstd[rt]}" for i in range(16)]
                L += pack8l(c_, c_) + pack8l(c_ + 4, c_ + 8)
                L.append(f"buffer_store_dwordx4 {V(c_,4)}, v{vO}, {S(dO0,4)}, s{so_[n]} offen{STF}")
                L.append(f"buffer_store_dwordx4 {V(c_+4,4)}, v{vO}, {S(dO0,4)}, s{so_[n]} offen offset:1024{STF}")
                return L
        if kind != "kv":
            nt = len(tiles)
            emit(a, fin(0) + fin(1))
            per = (len(eb) + nt - 1) // nt
            for n in range(nt):
                L = spread(epi(n), eb[n * per:(n + 1) * per])
                if n + 2 < nt:
                    interleave(a, fin(n + 2), L)
                else:
                    emit(a, L)
        else:
            kv_epilogue(a, locals())
        stamp(a, 5)
        if kind != "kv":
            a.I("s_barrier")
        early = E2
        if kind != "kv":
            a.I(f"v_mov_b32 v{u[2]}, 1")
            a.I(f"s_waitcnt vmcnt(0)")
            a.I("s_mov_b64 exec, 1")
            a.I(f"buffer_store_dword v{u[2]}, v{vZ}, {S(dFL,4)}, s{sFL} offen sc1")
            a.I("s_mov_b64 exec, -1")
        nv = sum(1 for it in a.items[mark:] if not isinstance(it, tuple) and it.cls == "vmem")
        a.I(f"s_waitcnt vmcnt({min(nv, 63)})")
        a.I(f"v_readfirstlane_b32 s{sT}, v{vCN}")
        a.I(f"s_cmp_ge_u32 s{sT}, 256")
        tgt = "p2_prod" if cls == 1 else (f"p2_gemm{early}")
        a.I(f"s_cbranch_scc1 {tgt}")
        a.I(f"s_mov_b32 s{sCNT}, 0")
        a.L(f"{C}_cw")
        a.I("s_sleep 4")
        a.I(f"buffer_load_dword v{vCN}, v{u[1]}, {S(dDbg,4)}, 0 offen sc1")
        a.I("s_waitcnt vmcnt(0)")
        a.I(f"v_readfirstlane_b32 s{sT}, v{vCN}")
        a.I(f"s_add_u32 s{sCNT}, s{sCNT}, 1")
        a.I(f"s_cmp_gt_u32 s{sCNT}, 0x8000")
        a.I(f"s_cbranch_scc1 {tgt}")
        a.I(f"s_cmp_ge_u32 s{sT}, 256")
        a.I(f"s_cbranch_scc0 {C}_cw")
        a.I(f"s_branch {tgt}")


KV_PIT = 112
KV_UNIT = 32 * KV_PIT
KV_WSC = 4 * KV_UNIT


def kv_addr(a, kvr, t, vL, SLOT):
    aWr, aPh, aV, aP, aPad = kvr[:5]
    PIT = KV_PIT
    a.I(f"v_and_b32 v{t[1]}, 31, v{vL}")
    a.I(f"v_lshrrev_b32 v{t[2]}, 5, v{vL}")
    a.I(f"v_bfe_u32 v{t[3]}, v{vL}, 2, 2")
    a.I(f"v_and_b32 v{t[4]}, 3, v{vL}")
    a.I(f"v_bfe_u32 v{t[5]}, v{vL}, 4, 1")
    a.I(f"s_mul_i32 s{sT}, s{sWV}, {KV_WSC}")
    a.I(f"v_mul_u32_u24 v{aPad}, {PIT}, v{t[1]}")
    a.I(f"v_add_u32 v{aPad}, s{sT}, v{aPad}")
    a.I(f"v_lshl_add_u32 v{aWr}, v{t[2]}, 4, v{aPad}")
    a.I(f"v_and_b32 v{t[6]}, 1, v{t[4]}")
    a.I(f"v_lshlrev_b32 v{t[6]}, 4, v{t[6]}")
    a.I(f"v_lshrrev_b32 v{t[7]}, 1, v{t[4]}")
    a.I(f"v_lshl_add_u32 v{t[6]}, v{t[7]}, 3, v{t[6]}")
    a.I(f"v_lshl_add_u32 v{t[7]}, v{t[2]}, 3, v{t[3]}")
    a.I(f"v_mul_u32_u24 v{t[7]}, {PIT}, v{t[7]}")
    a.I(f"v_add_u32 v{t[7]}, s{sT}, v{t[7]}")
    a.I(f"v_lshl_add_u32 v{aPh}, v{t[5]}, 5, v{t[7]}")
    a.I(f"v_add_u32 v{aPh}, v{aPh}, v{t[6]}")
    a.I(f"v_add_u32 v{t[6]}, 64, v{t[6]}")
    a.I(f"v_cmp_eq_u32 vcc, 0, v{t[5]}")
    a.I(f"v_mov_b32 v{aV}, 96")
    a.I(f"v_cndmask_b32 v{aV}, v{aV}, v{t[6]}, vcc")
    a.I(f"v_add_u32 v{aV}, v{aV}, v{t[7]}")
    a.I(f"v_lshl_add_u32 v{aP}, v{t[2]}, 2, v{t[3]}")
    a.I(f"v_lshlrev_b32 v{aP}, 5, v{aP}")
    a.I(f"v_lshl_add_u32 v{aP}, v{t[4]}, 3, v{aP}")
    a.I(f"s_lshl_b32 s{sT2}, s{sWV}, 10")
    a.I(f"s_add_u32 s{sT2}, s{sT2}, {3*SLOT}")
    a.I(f"v_add_u32 v{aP}, s{sT2}, v{aP}")


def kv_epilogue(a, e):
    acc, t, rstd, vL, fin, kvr = e["acc"], e["t"], e["rstd"], e["vL"], e["fin"], e["kvr"]
    setbase, adr, u = e["setbase"], e["adr"], e["u"]
    aWr, aPh, aV, aP, aPad = kvr[:5]
    WP = kvr[5:7]
    PIT, UNIT, WSC = KV_PIT, KV_UNIT, KV_WSC
    D = [setbase + 16 * n for n in range(4)]
    T4 = [adr[0][0], adr[0][1], adr[1][0], adr[1][1]]
    sgn = t[1]

    rl, std, sel = e["rl"], e["ir2"], e["sel"]

    def pack(n):
        c_ = acc[n]
        return pack8l(c_, c_) + pack8l(c_ + 4, c_ + 8)
    pre = [f"v_bfe_u32 v{sgn}, v{vL}, 4, 1", f"v_mul_u32_u24 v{sgn}, 0x8000, v{sgn}", f"v_lshl_or_b32 v{sgn}, v{sgn}, 16, v{sgn}"]
    for hd in range(2):
        pre += [f"v_xor_b32 v{WP[hd]+i}, v{WP[hd]+i}, v{sgn}" for i in range(4)]
    for rt in range(2):
        pre += [f"v_cvt_pk_bf16_f32 v{sel+2*rt}, v{std[rt]}, v{std[rt]}", f"v_mov_b32 v{sel+2*rt+1}, v{sel+2*rt}"]
    for n in range(4):
        for o in (96, 104):
            pre.append(f"ds_write_b64 v{aPad}, {V(sel+2*(n>>1),2)} offset:{n*UNIT+o}")
    interleave(a, fin(0) + fin(2), pre)
    interleave(a, fin(1) + fin(3), pack(0) + pack(2))
    phim = [f"{MFMA} {V(D[n],16)}, {V(WP[n&1],4)}, {V(acc[2*(n>>1)]+4*(n&1),4)}, 0" for n in range(4)]
    emit(a, phim)
    stamp(a, 11)
    for rt in range(2):
        emit(a, pack(2 * rt + 1))
        for hd in range(2):
            a.I(f"ds_write_b128 v{aWr}, {V(acc[2*rt+1]+4*hd,4)} offset:{(2*rt+hd)*UNIT+64}")

    def unit(n):
        L = softmax_pm(D[n], T4[n], f"v{rl[n>>1]}", post=rstd[n >> 1]) + pack8l(D[n], D[n]) + pack8l(D[n] + 4, D[n] + 8)
        L.append(f"ds_write_b128 v{aWr}, {V(D[n],4)} offset:{n*UNIT}")
        L.append(f"ds_write_b128 v{aWr}, {V(D[n]+4,4)} offset:{n*UNIT+32}")
        return L
    KV = [acc[0], acc[2]]
    F = [acc[1], acc[3]]

    def trreads(n):
        f = F[n & 1]
        L = []
        for kk in range(2):
            o = n * UNIT + kk * 16 * PIT
            L.append(f"ds_read_b64_tr_b16 {V(f+4*kk,2)}, v{aPh} offset:{o}")
            L.append(f"ds_read_b64_tr_b16 {V(f+4*kk+2,2)}, v{aPh} offset:{o+4*PIT}")
            L.append(f"ds_read_b64_tr_b16 {V(f+8+4*kk,2)}, v{aV} offset:{o}")
            L.append(f"ds_read_b64_tr_b16 {V(f+8+4*kk+2,2)}, v{aV} offset:{o+4*PIT}")
        return L

    def kvm(n):
        f = F[n & 1]; hd = n & 1
        L = []
        for kk in range(2):
            cc = "0" if (n < 2 and kk == 0) else V(KV[hd], 16)
            L.append(f"{MFMA} {V(KV[hd],16)}, {V(f+4*kk,4)}, {V(f+8+4*kk,4)}, {cc}")
        return L
    emit(a, zipl(unit(0), unit(1)))
    stamp(a, 12)
    u23 = zipl(unit(2), unit(3))
    emit(a, u23[:24])
    a.I("s_waitcnt lgkmcnt(0)")
    emit(a, spread(u23[24:90], trreads(0) + trreads(1)))
    a.I("s_waitcnt lgkmcnt(0)")
    interleave(a, kvm(0) + kvm(1), u23[90:])
    a.I("s_waitcnt lgkmcnt(0)")
    stamp(a, 13)
    emit(a, trreads(2) + trreads(3))
    a.I(f"s_mul_i32 s{sT}, s{sWV}, {WSC}")
    a.I(f"v_add_u32 v{aWr}, s{sT}, v{vO}")
    a.I(f"s_mul_i32 s{sT}, s{sRH}, {WSC}")
    a.I(f"s_lshl_b32 s{sT2}, s{sCQ}, 10")
    a.I(f"s_add_u32 s{sT}, s{sT}, s{sT2}")
    a.I(f"v_add_u32 v{aPad}, s{sT}, v{vO}")
    a.I(f"v_add_u32 v{aP}, {4*WSC}, v{aPad}")
    a.I("s_waitcnt lgkmcnt(8)")
    emit(a, kvm(2))
    a.I("s_waitcnt lgkmcnt(0)")
    emit(a, kvm(3))
    for hd in range(2):
        for q in range(4):
            a.I(f"ds_write_b128 v{aWr}, {V(KV[hd]+4*q,4)} offset:{hd*4096+q*1024}")
    a.I("s_waitcnt lgkmcnt(0)")
    stamp(a, 14)
    a.I("s_barrier")
    for hd in range(2):
        for q in range(4):
            ad = aPad if q < 2 else aP
            a.I(f"ds_read_b128 {V(KV[hd]+4*q,4)}, v{ad} offset:{(q&1)*2*WSC + hd*4096}")
    for hd in range(2):
        a.I(f"s_waitcnt lgkmcnt({4*(1-hd)})")
        k = KV[hd]
        for i in range(4):
            a.I(f"v_add_f32 v{k+i}, v{k+i}, v{k+4+i}")
            a.I(f"v_add_f32 v{k+8+i}, v{k+8+i}, v{k+12+i}")
        for i in range(4):
            a.I(f"v_add_f32 v{k+i}, v{k+i}, v{k+8+i}")
        a.I(f"buffer_store_dwordx4 {V(k,4)}, v{vO}, {S(dO0,4)}, s{sO[hd]} offen{STF}")
    a.I("s_barrier")


def spread(main, extra):
    if not extra:
        return list(main)
    out = []
    k = 0
    for i, m in enumerate(main):
        out.append(m)
        upto = len(extra) * (i + 1) // len(main)
        out += extra[k:upto]
        k = upto
    return out


NH, NO = 22, 8


def p2_common_setup(a, cls):
    a.I(f"v_lshlrev_b32 v{vO}, 4, v0")
    a.I(f"s_lshl_b32 s{sGr}, s{sROWQ}, 1")
    a.I(f"s_add_u32 s{sGr}, s{sGr}, s{sCOLH}")
    srd(a, dDbg, pDBG, pDBG + 1, 256)
    srd(a, dFL, pWS, pWS + 1, 32 * 256, add=FLB)
    if cls == 0:
        a.I(f"s_and_b32 s{sRB2}, s{sJ}, 3")
        a.I(f"s_lshr_b32 s{sCB}, s{sJ}, 2")
        a.I(f"s_mul_i32 s{sA}, s{sCB}, {OPT['rotc']}")
        a.I(f"s_mul_i32 s{sT}, s{sRB2}, {OPT['rotr']}")
        a.I(f"s_add_u32 s{sA}, s{sA}, s{sT}")
        for _ in range(1 + (7 * OPT['rotc'] + 3 * OPT['rotr']) // 44):
            a.I(f"s_sub_u32 s{sT}, s{sA}, 22")
            a.I(f"s_cmp_ge_u32 s{sA}, 22")
            a.I(f"s_cselect_b32 s{sA}, s{sT}, s{sA}")
        a.I(f"s_lshl_b32 s{sA}, s{sA}, 12")
        a.I(f"s_lshl_b32 s{sB}, s{sA}, 4")
        a.I(f"s_lshl_b32 s{sT}, s{sGr}, 2")
        a.I(f"s_add_u32 s{sRB2}, s{sRB2}, s{sT}")
        for i, (b, n) in enumerate(RGN):
            a.I(f"s_mul_i32 s{sMR[i]}, s{sWV}, {n*2048}")
            a.I(f"s_add_u32 s{sMR[i]}, s{sMR[i]}, {b}")
        a.I(f"s_lshl_b32 s{sT}, s{sRB2}, 16")
        a.I(f"s_add_u32 s{sT}, s{sT}, {OB}")
        srd(a, dOf0, pWS, pWS + 1, 32 * 1024, add=f"s{sT}")
        a.I(f"s_add_u32 s{sT}, s{sT}, {32*1024}")
        srd(a, dOf1, pWS, pWS + 1, 32 * 1024, add=f"s{sT}")
    else:
        srd(a, dOf0, pWS, pWS + 1, 64 * 32 * 1024, add=OB)
        a.I(f"s_lshl_b32 s{sT}, s{sGr}, 3")
        a.I(f"s_lshl_b32 s{sT2}, s{sWV}, 1")
        a.I(f"s_add_u32 s{sT}, s{sT}, s{sT2}")
        a.I(f"s_sub_u32 s{sT}, s{sT}, 8")
        a.I(f"s_lshl_b32 s{sT}, s{sT}, 5")
        a.I(f"s_add_u32 s{sT}, s{sT}, s{sJ}")
        a.I(f"s_lshl_b32 s{sQ0}, s{sT}, 10")
        a.I(f"s_add_u32 s{sQ1}, s{sQ0}, 32768")


def w2_prefetch(a, vt, junk, vTID):
    srd(a, dW2, pW2, pW2 + 1, 1376 * 1024)
    srd(a, dWOd, pWO, pWO + 1, 512 * 1024)


def w2_l2_prefetch(a, vt, junk):
    srd(a, dOf1, pW2, pW2 + 1, 1376 * 1024)
    a.I(f"s_and_b32 s{sT}, s{sJ}, 3")
    a.I(f"s_lshl_b32 s{sT2}, s{sWV}, 2")
    a.I(f"s_add_u32 s{sT}, s{sT}, s{sT2}")
    a.I(f"s_add_u32 s{sT}, s{sT}, {DB - 16}")
    a.I(f"s_lshr_b32 s{sT3}, s{sJ}, 2")
    a.I(f"v_lshlrev_b32 v{vt}, 10, v0")
    a.I(f"s_lshl_b32 s{sT2}, s{sT3}, 7")
    a.I(f"v_add_u32 v{vt}, s{sT2}, v{vt}")
    a.I(f"s_mul_i32 s{sT3}, s{sT3}, {OPT['rotc']}")
    a.I(f"s_add_u32 s{sT3}, s{sT3}, s{sT}")
    for _ in range(2):
        a.I(f"s_sub_u32 s{sT2}, s{sT3}, 22")
        a.I(f"s_cmp_ge_u32 s{sT3}, 22")
        a.I(f"s_cselect_b32 s{sT3}, s{sT2}, s{sT3}")
    a.I(f"s_sub_u32 s{sT2}, s{sT}, 22")
    a.I(f"s_cmp_ge_u32 s{sT}, 22")
    a.I(f"s_cselect_b32 s{sT3}, s{sT2}, s{sT3}")
    a.I(f"s_cselect_b32 s{dOf1}, s{pWO}, s{dOf1}")
    a.I(f"s_cselect_b32 s{dOf1+1}, s{pWO+1}, s{dOf1+1}")
    a.I(f"s_cselect_b32 s{dOf1+2}, {512*1024}, s{dOf1+2}")
    a.I(f"s_and_b32 s{dOf1+1}, s{dOf1+1}, 0xffff")
    a.I(f"s_lshl_b32 s{sT3}, s{sT3}, 16")
    a.I(f"buffer_load_dword v{junk}, v{vt}, {S(dOf1,4)}, s{sT3} offen")


dKV, dQ, dPH = 24, 28, 32


def p2_late_setup(a, cls, t):
    if cls == 0:
        a.I(f"s_mul_i32 s{sT}, s{sRB2}, {2*86*1024}")
        srd(a, dH0, pWS, pWS + 1, 86 * 1024, add=f"s{sT}")
        a.I(f"s_add_u32 s{sT}, s{sT}, {86*1024}")
        srd(a, dH1, pWS, pWS + 1, 86 * 1024, add=f"s{sT}")
        a.I(f"v_lshrrev_b32 v{t[0]}, 3, v0")
        a.I(f"v_and_b32 v{t[1]}, 7, v0")
        a.I(f"v_and_b32 v{t[2]}, 2, v{t[0]}")
        a.I(f"v_lshlrev_b32 v{t[2]}, 1, v{t[2]}")
        a.I(f"v_xor_b32 v{t[2]}, v{t[2]}, v{t[1]}")
        a.I(f"v_lshlrev_b32 v{t[2]}, 4, v{t[2]}")
        a.I(f"v_lshl_add_u32 v{vDX}, v{t[0]}, 10, v{t[2]}")
        a.I(f"s_lshl_b32 s{sT}, s{sWV}, 14")
        a.I(f"s_lshl_b32 s{sT2}, s{sCB}, 7")
        a.I(f"s_add_u32 s{sT}, s{sT}, s{sT2}")
        a.I(f"v_add_u32 v{vDX}, s{sT}, v{vDX}")
        a.I(f"v_add_u32 v{vDW}, 8192, v{vDX}")
    else:
        srd(a, dKV, pWS, pWS + 1, 8 * 32 * 4096, add=KVB)
        srd(a, dQ, pWS, pWS + 1, 64 * 32 * 1024, add=QB)
        srd(a, dPH, pWPHI, pWPHI + 1, 32 * 512)


def issueB_parts(a, step):
    rg, so = slot_rgn(step % DB)
    d = dW2 if step < NH else dWOd

    def f0():
        if step >= NH:
            a.I(f"s_mov_b32 s{sB}, {(step-NH)*65536}")
        a.I(f"s_add_u32 m0, s{sMR[rg]}, {so}")
        a.I(f"buffer_load_dwordx4 v{vDX}, {S(d,4)}, s{sB} offen lds")

    def f1():
        a.I(f"s_add_u32 m0, s{sMR[rg]}, {so+1024}")
        a.I(f"buffer_load_dwordx4 v{vDW}, {S(d,4)}, s{sB} offen lds")
        if step < NH - 1:
            a.I(f"s_add_u32 s{sB}, s{sB}, 65536")
            a.I(f"s_cmp_eq_u32 s{sB}, {NH*65536}")
            a.I(f"s_cselect_b32 s{sB}, 0, s{sB}")
    return [f0, f1]


def p2_gemm(a, early):
    P = f"p2_gemm{early}"
    DA = OPT["da"]
    OAT = OPT["oat"]
    RP = 272
    vL, vTID = 0, 1
    r = Regs(5, VLIM, "v")
    vA = r.alloc(); aB = [[r.alloc(), r.alloc()] for _ in RGN]
    t = [r.alloc() for _ in range(8)]
    acc = [r.alloc(16, 4) for _ in range(4)]
    fa = [r.alloc(8, 4) for _ in range(DA)]
    fb = [[r.alloc(4, 4) for _ in range(2)] for _ in range(2)]
    xr = [r.alloc(4, 4) for _ in range(2)]
    a.L(P)
    stamp(a, 6)
    a.I(f"s_lshl_b32 s{sT}, s{sWV}, 10")
    a.I(f"v_min_u32 v{t[6]}, 39, v{vL}")
    a.I(f"v_lshlrev_b32 v{t[6]}, 2, v{t[6]}")
    a.I(f"s_lshl_b32 s{sT2}, s{sRB2}, 8")
    a.I(f"s_mov_b32 s{sCNT}, 0")
    probe = [f"buffer_load_dword v{t[4]}, v{t[6]}, {S(dFL,4)}, s{sT2} offen sc1"]
    PRE = max(OPT["pre"], early)
    a.I(f"s_lshl_b32 s{sT3}, s{sWV}, 14")
    a.I(f"s_add_u32 s{sT2}, s{sT2}, s{sT3}")
    emit(a, probe)
    for tb in range(early, PRE):
        emit(a, issueB_parts(a, tb))
    a.I(f"v_add_u32 v{vA}, s{sT}, v{vO}")
    a.I(f"v_lshrrev_b32 v{t[0]}, 5, v{vL}")
    a.I(f"v_bfe_u32 v{t[1]}, v{vL}, 2, 2")
    a.I(f"v_lshl_add_u32 v{t[0]}, v{t[0]}, 2, v{t[1]}")
    a.I(f"v_lshlrev_b32 v{t[0]}, 7, v{t[0]}")
    a.I(f"v_and_b32 v{t[2]}, 3, v{vL}")
    a.I(f"v_lshl_add_u32 v{t[0]}, v{t[2]}, 3, v{t[0]}")
    a.I(f"v_bfe_u32 v{t[2]}, v{vL}, 4, 1")
    a.I(f"v_and_b32 v{t[1]}, 2, v{t[1]}")
    a.I(f"v_or_b32 v{t[2]}, v{t[2]}, v{t[1]}")
    a.I(f"v_lshl_add_u32 v{t[1]}, v{t[2]}, 5, v{t[0]}")
    a.I(f"v_xor_b32 v{t[2]}, 2, v{t[2]}")
    a.I(f"v_lshl_add_u32 v{t[2]}, v{t[2]}, 5, v{t[0]}")
    for i in range(len(RGN)):
        a.I(f"v_add_u32 v{aB[i][0]}, s{sMR[i]}, v{t[1]}")
        a.I(f"v_add_u32 v{aB[i][1]}, s{sMR[i]}, v{t[2]}")
    a.I(f"v_mov_b32 v{t[7]}, {L_CNT}")
    a.I(f"s_cmp_lg_u32 s{sWV}, 0")
    a.I(f"s_cbranch_scc1 {P}_lw")
    a.I(f"s_waitcnt vmcnt({2*(PRE-early)})")
    a.L(f"{P}_pr")
    a.I(f"v_cmp_ne_u32 vcc, 1, v{t[4]}")
    a.I(f"s_cbranch_vccz {P}_set")
    a.I(f"s_add_u32 s{sCNT}, s{sCNT}, 1")
    a.I(f"s_cmp_gt_u32 s{sCNT}, 0x8000")
    a.I(f"s_cbranch_scc1 {P}_set")
    a.I(f"s_sleep {OPT['slp']}")
    emit(a, probe)
    a.I("s_waitcnt vmcnt(0)")
    a.I(f"s_branch {P}_pr")
    a.L(f"{P}_set")
    a.I(f"v_mov_b32 v{t[4]}, 1")
    a.I(f"ds_write_b32 v{t[7]}, v{t[4]} offset:4")
    a.I(f"s_branch {P}_go")
    a.L(f"{P}_lw")
    a.I(f"ds_read_b32 v{t[4]}, v{t[7]} offset:4")
    a.I("s_waitcnt lgkmcnt(0)")
    a.I(f"v_cmp_ne_u32 vcc, 1, v{t[4]}")
    a.I(f"s_cbranch_vccz {P}_go")
    a.I(f"s_add_u32 s{sCNT}, s{sCNT}, 1")
    a.I(f"s_cmp_gt_u32 s{sCNT}, 0x100000")
    a.I(f"s_cbranch_scc1 {P}_go")
    a.I("s_sleep 1")
    a.I(f"s_branch {P}_lw")
    a.L(f"{P}_go")
    stamp(a, 7)
    vm = [("B", tb) for tb in range(PRE) for _ in range(2)]

    def loadsA(step, so):
        s = step % DA
        d0, d1 = (dH0, dH1) if step < NH else (dOf0, dOf1)
        return [f"buffer_load_dwordx4 {V(fa[s],4)}, v{vA}, {S(d0,4)}, s{so} offen sc1",
                f"buffer_load_dwordx4 {V(fa[s]+4,4)}, v{vA}, {S(d1,4)}, s{so} offen sc1"]

    def issueA(step):
        if step < NH:
            emit(a, loadsA(step, sA))
            a.I(f"s_add_u32 s{sA}, s{sA}, 4096")
            a.I(f"s_cmp_eq_u32 s{sA}, {NH*4096}")
            a.I(f"s_cselect_b32 s{sA}, 0, s{sA}")
        else:
            a.I(f"s_mov_b32 s{sAo}, {(step-NH)*4096}")
            emit(a, loadsA(step, sAo))
        vm.extend([("A", step)] * 2)

    def issueB(step):
        emit(a, issueB_parts(a, step))
        vm.extend([("B", step)] * 2)

    def wait_for(tags):
        hit = [i for i, tg in enumerate(vm) if tg in tags]
        if not hit:
            return
        idx = max(hit)
        a.I(f"s_waitcnt vmcnt({min(63, len(vm) - 1 - idx)})")
        del vm[:idx + 1]

    def readsB(step):
        rg, so = slot_rgn(step % DB)
        f = fb[step & 1]
        for ct in range(2):
            a.I(f"ds_read_b64_tr_b16 {V(f[ct],2)}, v{aB[rg][ct]} offset:{so}")
            a.I(f"ds_read_b64_tr_b16 {V(f[ct]+2,2)}, v{aB[rg][ct]} offset:{so+1024}")

    a.I(f"s_mov_b32 s{sG}, s{sA}")
    NS = NH + NO
    nextA = 0; nextB = PRE
    while nextA < DA or nextB < min(DB, DA + 2):
        if nextB < min(DB, DA + 2) and nextB <= nextA + 1 or nextA >= DA:
            issueB(nextB); nextB += 1
        else:
            issueA(nextA); nextA += 1
    retries = []
    wait_for({("B", 0)})
    readsB(0)
    for st in range(NS):
        if st == OAT:
            stamp(a, 8)
            while nextA < NS and nextA < st + DA:
                issueA(nextA); nextA += 1
        if st + 1 < NS:
            wait_for({("B", st + 1), ("A", st)})
            a.I("s_waitcnt lgkmcnt(0)")
            readsB(st + 1)
        else:
            wait_for({("A", st)})
            a.I("s_waitcnt lgkmcnt(0)")
        s = st % DA
        f = fb[st & 1]
        if st == NH:
            stamp(a, 9)
        if st >= NH:
            chk = sentinel_check(fa[s], t[4], t[5]) + [f"v_cmp_eq_u32 vcc, -1, v{t[4]}"]
            emit(a, chk)
            a.I(f"s_cbranch_vccnz {P}_retry{st}")
            a.L(f"{P}_back{st}")
            retries.append((st, chk))
        for rt in range(2):
            for ct in range(2):
                c_ = acc[2 * rt + ct]
                cc = "0" if st == 0 else V(c_, 16)
                a.I(f"{MFMA} {V(c_,16)}, {V(f[ct],4)}, {V(fa[s]+4*rt,4)}, {cc}")
        if nextA < NS and (nextA < NH or st >= OAT) and nextA <= st + DA:
            issueA(nextA); nextA += 1
        for _ in range(2):
            if nextB < NS and nextB <= st + DB:
                issueB(nextB); nextB += 1
        if st == NS - 10:
            a.I(f"s_lshl_b32 s{sT}, s{sRB2}, 16")
            srd(a, dXr, pX, pX + 1, 65536, add=f"s{sT}")
            srd(a, dOut, pOUT, pOUT + 1, 65536, add=f"s{sT}")
            a.I(f"v_lshrrev_b32 v{t[0]}, 3, v{vTID}")
            a.I(f"v_and_b32 v{t[1]}, 7, v{vTID}")
            a.I(f"v_lshlrev_b32 v{t[2]}, 10, v{t[0]}")
            a.I(f"v_lshl_add_u32 v{t[2]}, v{t[1]}, 4, v{t[2]}")
            a.I(f"s_lshl_b32 s{sT}, s{sCB}, 7")
            a.I(f"v_add_u32 v{t[2]}, s{sT}, v{t[2]}")
            a.I(f"v_add_u32 v{t[3]}, 32768, v{t[2]}")
            a.I(f"buffer_load_dwordx4 {V(xr[0],4)}, v{t[2]}, {S(dXr,4)}, 0 offen")
            a.I(f"buffer_load_dwordx4 {V(xr[1],4)}, v{t[3]}, {S(dXr,4)}, 0 offen")
            vm.extend([("X", 0)] * 2)
    assert nextA == NS and nextB == NS
    stamp(a, 10)
    assert all(32 * RP <= RGN[1 + rt][1] * 2048 for rt in range(2))
    w0, w1, r0 = aB[0][0], aB[0][1], aB[1][0]
    a.I(f"v_and_b32 v{w0}, 31, v{vL}")
    a.I(f"v_mul_u32_u24 v{w0}, {RP}, v{w0}")
    a.I(f"v_lshrrev_b32 v{w1}, 5, v{vL}")
    a.I(f"v_lshl_add_u32 v{w0}, v{w1}, 4, v{w0}")
    a.I(f"v_add_u32 v{w1}, s{sMR[2]}, v{w0}")
    a.I(f"v_add_u32 v{w0}, s{sMR[1]}, v{w0}")
    a.I(f"v_mul_u32_u24 v{r0}, {RP}, v{t[0]}")
    a.I(f"v_lshl_add_u32 v{r0}, v{t[1]}, 5, v{r0}")
    a.I(f"v_add_u32 v{vA}, {RGN[2][0]}, v{r0}")
    for rt in range(2):
        for ct in range(2):
            for q in range(4):
                a.I(f"ds_write_b128 v{w0 if rt == 0 else w1}, {V(acc[2*rt+ct]+4*q,4)} offset:{ct*128 + q*32}")
    a.I("s_waitcnt lgkmcnt(0)")
    a.I("s_barrier")
    Rr = acc[0]
    assert RGN[1][0] == 0
    for hf in range(2):
        for w in range(4):
            for p in range(2):
                a.I(f"ds_read_b128 {V(Rr + hf*32 + w*8 + p*4, 4)}, v{r0 if hf == 0 else vA} offset:{w*RGN[1+hf][1]*2048 + p*16}")
    a.I("s_waitcnt vmcnt(0)")
    for hf in range(2):
        a.I(f"s_waitcnt lgkmcnt({8*(1-hf)})")
        b = Rr + hf * 32
        for i in range(8):
            a.I(f"v_add_f32 v{b+i}, v{b+i}, v{b+8+i}")
            a.I(f"v_add_f32 v{b+16+i}, v{b+16+i}, v{b+24+i}")
        for i in range(4):
            a.I(f"v_lshlrev_b32 v{b+8+2*i}, 16, v{xr[hf]+i}")
            a.I(f"v_and_b32 v{b+8+2*i+1}, 0xffff0000, v{xr[hf]+i}")
        for i in range(8):
            a.I(f"v_add_f32 v{b+i}, v{b+i}, v{b+16+i}")
        for i in range(8):
            a.I(f"v_add_f32 v{b+i}, v{b+i}, v{b+8+i}")
        pack8(a, b + 16, b)
        a.I(f"buffer_store_dwordx4 {V(b+16,4)}, v{t[2+hf]}, {S(dOut,4)}, 0 offen")
    stamp_out(a)
    a.I("s_endpgm")
    for (st, chk) in retries:
        a.L(f"{P}_retry{st}")
        a.I(f"s_mov_b32 s{sCNT}, 0")
        if st < NH:
            a.I(f"s_add_u32 s{sT2}, s{sG}, {st*4096}")
            a.I(f"s_sub_u32 s{sT3}, s{sT2}, {NH*4096}")
            a.I(f"s_cmp_ge_u32 s{sT2}, {NH*4096}")
            a.I(f"s_cselect_b32 s{sT2}, s{sT3}, s{sT2}")
        else:
            a.I(f"s_mov_b32 s{sT2}, {(st-NH)*4096}")
        a.L(f"{P}_rl{st}")
        a.I("s_sleep 2")
        emit(a, loadsA(st, sT2))
        a.I("s_waitcnt vmcnt(0)")
        emit(a, chk)
        a.I(f"s_add_u32 s{sCNT}, s{sCNT}, 1")
        a.I(f"s_cmp_gt_u32 s{sCNT}, 0x8000")
        a.I(f"s_cbranch_scc1 {P}_back{st}")
        a.I(f"s_cbranch_vccnz {P}_rl{st}")
        a.I(f"s_branch {P}_back{st}")


def p2_prod(a):
    vL = 0
    a.L("p2_prod")
    stamp(a, 6)
    a.I("s_setprio 3")
    r = Regs(5, VLIM, "v")
    t = [r.alloc() for _ in range(8)]
    vK = r.alloc(); aP = r.alloc(); sgn = r.alloc(); aKW = r.alloc(); aKR = r.alloc()
    KP = [r.alloc(16, 4) for _ in range(4)]
    QF = r.alloc(8, 4)
    WP = r.alloc(4, 4)
    D = [r.alloc(16, 4) for _ in range(2)]
    O = [r.alloc(16, 4) for _ in range(2)]
    T4 = [r.alloc(4) for _ in range(2)]
    sPW, sK0, sK1 = sRH, sCQ, sROT
    a.I(f"s_sub_u32 s{sPW}, s{sWV}, 4")
    a.I(f"s_lshl_b32 s{sM}, s{sPW}, 10")
    a.I(f"s_add_u32 s{sM}, s{sM}, {L_PH}")
    a.I(f"s_lshl_b32 s{sT}, s{sJ}, 9")
    a.I(f"s_mov_b32 m0, s{sM}")
    qloads = [f"buffer_load_dwordx4 {V(QF,4)}, v{vO}, {S(dQ,4)}, s{sQ0} offen sc1",
              f"buffer_load_dwordx4 {V(QF+4,4)}, v{vO}, {S(dQ,4)}, s{sQ1} offen sc1"]
    a.I(f"buffer_load_dwordx4 v{vO}, {S(dPH,4)}, s{sT} offen lds")
    a.I(f"s_lshl_b32 s{sT2}, s{sGr}, 2")
    a.I(f"s_add_u32 s{sT2}, s{sT2}, s{sPW}")
    a.I(f"s_lshl_b32 s{sT2}, s{sT2}, 8")
    a.I(f"s_lshr_b32 s{sT}, s{sJ}, 4")
    a.I(f"s_lshl_b32 s{sT}, s{sT}, 4")
    a.I(f"s_add_u32 s{sT2}, s{sT2}, s{sT}")
    a.I(f"v_and_b32 v{t[7]}, 3, v{vL}")
    a.I(f"v_lshlrev_b32 v{t[7]}, 2, v{t[7]}")
    qprobe = f"buffer_load_dword v{t[6]}, v{t[7]}, {S(dFL,4)}, s{sT2} offen offset:192 sc1"
    a.I(qprobe)
    a.I(f"v_and_b32 v{t[0]}, 31, v{vL}")
    a.I(f"v_min_u32 v{t[0]}, 16, v{t[0]}")
    a.I(f"v_and_b32 v{t[1]}, 32, v{vL}")
    a.I(f"v_add_u32 v{t[0]}, v{t[0]}, v{t[1]}")
    a.I(f"v_lshlrev_b32 v{vK}, 4, v{t[0]}")
    a.I(f"s_lshl_b32 s{sK0}, s{sJ}, 12")
    a.I(f"s_lshl_b32 s{sK1}, s{sPW}, 10")
    a.I(f"s_add_u32 s{sK0}, s{sK0}, s{sK1}")
    kloads = []
    for p in range(8):
        kloads.append(f"s_add_u32 s{sK1}, s{sK0}, {p*32*4096}")
        kloads.append(f"buffer_load_dwordx4 {V(KP[0]+4*p,4)}, v{vK}, {S(dKV,4)}, s{sK1} offen sc1")
    a.I(f"v_mov_b32 v{t[2]}, {L_CNT}")
    a.I(f"v_mov_b32 v{t[3]}, 1")
    a.I(f"v_lshrrev_b32 v{t[4]}, 5, v{vL}")
    a.I(f"v_bfe_u32 v{t[5]}, v{vL}, 2, 2")
    a.I(f"v_lshl_add_u32 v{aP}, v{t[4]}, 2, v{t[5]}")
    a.I(f"v_lshlrev_b32 v{aP}, 5, v{aP}")
    a.I(f"v_and_b32 v{t[5]}, 3, v{vL}")
    a.I(f"v_lshl_add_u32 v{aP}, v{t[5]}, 3, v{aP}")
    a.I(f"v_add_u32 v{aP}, s{sM}, v{aP}")
    a.I(f"v_bfe_u32 v{t[5]}, v{vL}, 4, 1")
    a.I(f"v_mul_u32_u24 v{sgn}, 0x8000, v{t[5]}")
    a.I(f"v_lshl_or_b32 v{sgn}, v{sgn}, 16, v{sgn}")
    a.I(f"s_lshl_b32 s{sT}, s{sPW}, 9")
    a.I(f"v_lshlrev_b32 v{aKR}, 3, v{vL}")
    a.I(f"v_add_u32 v{aKR}, {L_KV}, v{aKR}")
    a.I(f"v_add_u32 v{aKW}, s{sT}, v{aKR}")

    def until_ready(name, loads, groups):
        a.I(f"s_mov_b32 s{sCNT}, 0")
        a.L(f"{name}_chk")
        a.I("s_waitcnt vmcnt(0)")
        for n, g in enumerate(groups):
            emit(a, sentinel_check(g, t[6] if n else t[4], t[5]))
            if n:
                a.I(f"v_max_u32 v{t[4]}, v{t[4]}, v{t[6]}")
        a.I(f"v_cmp_eq_u32 vcc, -1, v{t[4]}")
        a.I(f"s_cbranch_vccz {name}_ok")
        a.I(f"s_add_u32 s{sCNT}, s{sCNT}, 1")
        a.I(f"s_cmp_gt_u32 s{sCNT}, 0x8000")
        a.I(f"s_cbranch_scc1 {name}_ok")
        a.I("s_sleep 6")
        emit(a, loads)
        a.I(f"s_branch {name}_chk")
        a.L(f"{name}_ok")
    a.I(f"s_mov_b32 s{sCNT}, 0")
    a.L("p2q_chk")
    a.I("s_waitcnt vmcnt(0)")
    a.I(f"v_cmp_ne_u32 vcc, 1, v{t[6]}")
    a.I("s_cbranch_vccz p2q_ok")
    a.I(f"s_add_u32 s{sCNT}, s{sCNT}, 1")
    a.I(f"s_cmp_gt_u32 s{sCNT}, 0x8000")
    a.I("s_cbranch_scc1 p2q_ok")
    a.I("s_sleep 4")
    a.I(qprobe)
    a.I("s_branch p2q_chk")
    a.L("p2q_ok")
    emit(a, qloads)
    a.I("s_waitcnt vmcnt(0)")
    stamp(a, 7)
    a.I(f"ds_read_b64_tr_b16 {V(WP,2)}, v{aP}")
    a.I(f"ds_read_b64_tr_b16 {V(WP+2,2)}, v{aP} offset:256")
    a.I("s_waitcnt lgkmcnt(0)")
    for i in range(4):
        a.I(f"v_xor_b32 v{WP+i}, v{WP+i}, v{sgn}")
    for rt in range(2):
        a.I(f"{MFMA} {V(D[rt],16)}, {V(WP,4)}, {V(QF+4*rt,4)}, 0")
    sm = zipl(*[softmax_pm(D[rt], T4[rt], f"s{sL2E}") + pack8l(D[rt], D[rt]) + pack8l(D[rt] + 4, D[rt] + 8) for rt in range(2)])
    a.I(f"v_and_b32 v{t[7]}, 7, v{vL}")
    a.I(f"v_lshlrev_b32 v{t[7]}, 17, v{t[7]}")
    kprobe = f"buffer_load_dword v{t[6]}, v{t[7]}, {S(dKV,4)}, s{sK0} offen sc1"
    emit(a, sm[:len(sm) * 2 // 3])
    a.I(kprobe)
    emit(a, sm[len(sm) * 2 // 3:])
    stamp(a, 8)
    a.I(f"s_mov_b32 s{sCNT}, 0")
    a.L("p2kp_chk")
    a.I("s_waitcnt vmcnt(0)")
    a.I(f"v_cmp_eq_u32 vcc, -1, v{t[6]}")
    a.I("s_cbranch_vccz p2kp_ok")
    a.I(f"s_add_u32 s{sCNT}, s{sCNT}, 1")
    a.I(f"s_cmp_gt_u32 s{sCNT}, 0x8000")
    a.I("s_cbranch_scc1 p2kp_ok")
    a.I(f"s_sleep {OPT['slpk']}")
    a.I(kprobe)
    a.I("s_branch p2kp_chk")
    a.L("p2kp_ok")
    emit(a, kloads)
    until_ready("p2k", kloads, [KP[0], KP[0] + 8, KP[1], KP[1] + 8])
    stamp(a, 9)
    K0 = KP[0]
    for step in (16, 8, 4):
        for i in range(step):
            a.I(f"v_add_f32 v{K0+i}, v{K0+i}, v{K0+step+i}")
    a.I(f"v_cvt_pk_bf16_f32 v{K0+4}, v{K0}, v{K0+1}")
    a.I(f"v_cvt_pk_bf16_f32 v{K0+5}, v{K0+2}, v{K0+3}")
    a.I(f"ds_write_b64 v{aKW}, {V(K0+4,2)}")
    a.I("s_waitcnt lgkmcnt(0)")
    a.I("s_mov_b64 exec, 1")
    a.I(f"ds_add_u32 v{t[2]}, v{t[3]}")
    a.I("s_mov_b64 exec, -1")
    a.I(f"s_mov_b32 s{sCNT}, 0")
    a.L("p2_pc")
    a.I(f"ds_read_b32 v{t[4]}, v{t[2]}")
    a.I("s_waitcnt lgkmcnt(0)")
    a.I(f"v_readfirstlane_b32 s{sT}, v{t[4]}")
    a.I(f"s_add_u32 s{sCNT}, s{sCNT}, 1")
    a.I(f"s_cmp_gt_u32 s{sCNT}, 0x100000")
    a.I("s_cbranch_scc1 p2_pc_done")
    a.I(f"s_cmp_lt_u32 s{sT}, 4")
    a.I("s_cbranch_scc1 p2_pc")
    a.L("p2_pc_done")
    for q in range(4):
        a.I(f"ds_read_b64 {V(KP[1]+2*q,2)}, v{aKR} offset:{q*512}")
    a.I("s_waitcnt lgkmcnt(0)")
    for rt in range(2):
        a.I(f"{MFMA} {V(O[rt],16)}, {V(KP[1],4)}, {V(D[rt],4)}, 0")
    for rt in range(2):
        a.I(f"{MFMA} {V(O[rt],16)}, {V(KP[1]+4,4)}, {V(D[rt]+4,4)}, {V(O[rt],16)}")
    for rt in range(2):
        o = O[rt]
        a.I(f"v_add_f32 v{o+8}, 0x358637bd, v{o+8}")
        a.I(f"v_rcp_f32 v{o+8}, v{o+8}")
        for i in range(8):
            a.I(f"v_mul_f32 v{o+i}, v{o+i}, v{o+8}")
        pack8(a, o + 12, o)
        a.I(f"buffer_store_dwordx4 {V(o+12,4)}, v{vO}, {S(dOf0,4)}, s{sQ0 if rt == 0 else sQ1} offen sc1")
    stamp(a, 10)
    stamp_out(a)
    a.I("s_endpgm")


def gen():
    a = Asm()
    a.I("s_cmp_ge_u32 s2, 256")
    a.I("s_cbranch_scc1 k_end")
    if OPT["stamp"]:
        a.I(f"v_mov_b32 v{vST}, 0")
    stamp(a, 0)
    a.I("s_load_dwordx4 s[4:7], s[0:1], 0")
    a.I("s_load_dwordx4 s[12:15], s[0:1], 40")
    a.I("s_load_dwordx4 s[8:11], s[0:1], 16")
    a.I("s_load_dwordx4 s[16:19], s[0:1], 56")
    a.I("s_load_dwordx4 s[20:23], s[0:1], 72")
    a.I("v_mov_b32 v1, v0")
    a.I("v_lshrrev_b32 v2, 6, v0")
    a.I("v_and_b32 v0, 63, v0")
    a.I(f"v_readfirstlane_b32 s{sWV}, v2")
    a.I(f"s_lshr_b32 s{sJ}, s2, 3")
    a.I(f"s_and_b32 s{sROWQ}, s2, 3")
    a.I(f"s_bfe_u32 s{sCOLH}, s2, 0x10002")
    a.I(f"s_cmp_lt_u32 s{sJ}, 20")
    a.I("s_cbranch_scc1 k1_ffn")
    a.I(f"s_cmp_lt_u32 s{sJ}, 28")
    a.I("s_cbranch_scc1 k1_kv")
    k1_type(a, "q")
    a.L("k_end")
    a.I("s_endpgm")
    k1_type(a, "kv")
    k1_type(a, "ffn")
    a.L("p2_start")
    p2_prod(a)
    e1 = RGN[0][1] if OPT["e1"] else 0
    for e in sorted({e1, e1 + (RGN[1][1] if OPT["e2"] else 0)}, reverse=True):
        p2_gemm(a, e)
    return a


def main(out):
    ref = open(f"cdna_kernels/{NAME}.s.ref").read().split("\n")
    head = [l for l in ref if l.startswith(";") and "@launch" not in l and "Override" not in l and "grid=ceil" not in l]
    k = gen()
    n = k.fix_hazards("-v" in sys.argv)
    txt = "\n".join(head) + "\n"
    txt += f"; @launch grid=(256,1,1) block=(512,1,1) lds={LDS_TOTAL}\n"
    txt += '.amdgcn_target "amdgcn-amd-amdhsa--gfx950"\n.text\n'
    txt += f".globl {KN}\n.p2align 8\n.type {KN},@function\n{KN}:\n" + k.text()
    txt += ".fill 8192, 4, 0xbf810000\n"
    txt += f""".section .rodata,"a"
.p2align 6
.amdhsa_kernel {KN}
  .amdhsa_next_free_vgpr 256
  .amdhsa_next_free_sgpr 102
  .amdhsa_accum_offset 256
  .amdhsa_group_segment_fixed_size 0
  .amdhsa_kernarg_size 88
  .amdhsa_user_sgpr_count 2
  .amdhsa_user_sgpr_kernarg_segment_ptr 1
  .amdhsa_system_sgpr_workgroup_id_x 1
.end_amdhsa_kernel
"""
    open(out, "w").write(txt)
    print(f"written {out}: hazard pads {n}")


if __name__ == "__main__":
    out = [x for x in sys.argv[1:] if not x.startswith("-")]
    main(out[0] if out else f"cdna_kernels/{NAME}.s")
```

```python
import sys, os
sys.path.insert(0, os.path.dirname(os.path.abspath(__file__)))
from asm import Asm, Regs, V, S

NAME = "parallel_sum__linear_kernel_hedgehog__glu_gated_swiglu__prompt"
KN = NAME + "_kernel"

HB = 0
QB = 0x600000
KVB = 0x800000
OB = 0x900000
FLB = 0xB00000
STB = 0xC00000
LOG2E = 0x3fb8aa3b
RS1 = 2752
RSQ = 3072
MFMA = "v_mfma_f32_32x32x16_bf16"
M16 = "v_mfma_f32_16x16x32_bf16"
OPT = dict(stamp="--stamp" in sys.argv, nodot="--nodot" in sys.argv, nodma="--nodma" in sys.argv,
           nomfma="--nomfma" in sys.argv, nolds="--nolds" in sys.argv,
           da=12, oat=18, stagger=1, pfw2=0, rotc=3, rotr=0, e1=1, e2=1, pre=15, fillch=3, slp=4, slpk=6, perm=0, pfc=3, cpf=1, dbgclk=0)
for _x in sys.argv:
    if _x.startswith("--") and "=" in _x:
        _k, _v = _x[2:].split("=")
        OPT[_k] = int(_v)
STF = " sc1"
PMASK = [[0]*8, [0,0,1,1,3,3,3,3], [1]*8, [3]*8, [0,0,1,1,1,1,1,1], [1,1,1,1,3,3,3,3], [7]*8][OPT["perm"]]

RGN = [(114944, 4), (0, 6), (53376, 5)]
DB = sum(n for _, n in RGN)
L_KV = 94336
L_PH = 147712
L_SC = 153536
L_CNT = 163776


def slot_rgn(s):
    for i, (b, n) in enumerate(RGN):
        if s < n:
            return i, s * 2048
        s -= n


LDS_TOTAL = 163840
assert L_PH + 4096 <= L_SC and L_SC + 10240 <= L_CNT and L_KV + 16384 <= RGN[0][0] and RGN[2][0] + 4 * 5 * 2048 <= L_KV

pX, pWQKV, pWPHI, pWO, pW1, pW3, pW2, pOUT, pDBG, pWS = 4, 6, 8, 10, 12, 14, 16, 18, 20, 22
dX, dWA, dWB, dWE, dO0, dO1, dOf0, dOf1, dFL, dDbg = 24, 28, 32, 36, 40, 44, 48, 52, 56, 64
dXr, dOut = dO0, dO1
dH0, dH1, dW2, dWOd = dX, dWA, dWB, dWE

sWV, sJ, sROWQ, sCOLH, sRB, sG, sRH, sCQ, sROT, sDST = 68, 69, 70, 71, 72, 73, 74, 75, 76, 77
sT, sT2, sT3, sELDS, sL2E, sRT0, sRT1, sTI = 78, 79, 80, 81, 82, 83, 84, 85
sMASK = 100
sO = [88, 89, 90, 91]
sGr, sRB2, sCB, sA, sB, sM, sCNT, sAo = 92, 93, 94, 95, 96, 97, 98, 99
sMR = [sM, 60, 61]
sQ0, sQ1 = sA, sB
sPF, sXO, sWOc = 62, 63, 87
sFL = 3
sWO = sO[3]
vDX, vDW, vO = 2, 3, 4
vST = 255
VLIM = 255


def stamp(a, i):
    if OPT["stamp"]:
        a.I(f"{'s_memtime' if '--cyc' in sys.argv else 's_memrealtime'} s[100:101]")
        a.I("s_waitcnt lgkmcnt(0)")
        a.I(f"v_writelane_b32 v{vST}, s100, {i}")


def stamp_out(a):
    if not OPT["stamp"]:
        return
    a.I("s_waitcnt vmcnt(0)")
    stamp(a, 15)
    srd(a, dDbg, pWS, pWS + 1, 256 * 8 * 64, add=STB)
    a.I(f"s_lshl_b32 s{sT}, s2, 3")
    a.I(f"s_add_u32 s{sT}, s{sT}, s{sWV}")
    a.I(f"s_lshl_b32 s{sT}, s{sT}, 6")
    a.I("v_lshlrev_b32 v254, 2, v0")
    a.I("s_mov_b64 exec, 0xffff")
    a.I(f"buffer_store_dword v{vST}, v254, {S(dDbg,4)}, s{sT} offen")
    a.I("s_mov_b64 exec, -1")


def code_prefetch(a, vtmp, vjunk, ranges, vtid):
    if not OPT["cpf"]:
        return
    a.I(f"v_lshlrev_b32 v{vtmp}, 4, v{vtid}")
    for (lab, nbytes) in ranges:
        here = f"pc{len(a.items)}"
        a.I("s_getpc_b64 s[96:97]")
        a.L(here)
        if lab is not None:
            a.I(f"s_add_u32 s96, s96, {lab}-{here}")
            a.I(f"s_addc_u32 s97, s97, 0")
        for i in range((nbytes + 8191) // 8192):
            a.I(f"global_load_dwordx4 {V(vjunk,4)}, v{vtmp}, s[96:97]")
            if (i + 1) * 8192 < nbytes:
                a.I("s_add_u32 s96, s96, 8192")
                a.I("s_addc_u32 s97, s97, 0")


def sentinel_check(regs, t0, t1):
    z = regs
    return [f"v_max3_u32 v{t0}, v{z}, v{z+1}, v{z+2}", f"v_max3_u32 v{t1}, v{z+3}, v{z+4}, v{z+5}",
            f"v_max3_u32 v{t0}, v{z+6}, v{z+7}, v{t0}", f"v_max_u32 v{t0}, v{t0}, v{t1}"]


def interleave(a, main, fill):
    n = len(main)
    k = 0
    for i, m in enumerate(main):
        a.I(m)
        upto = (len(fill) * (i + 1) + n - 1) // n if i < n - 1 else len(fill)
        while k < upto:
            f = fill[k]
            if callable(f):
                f()
            else:
                a.I(f)
            k += 1


def srd(a, d, lo, hi, size, add=None):
    if add is None:
        a.I(f"s_mov_b32 s{d}, s{lo}")
        a.I(f"s_and_b32 s{d+1}, s{hi}, 0xffff")
    else:
        a.I(f"s_add_u32 s{d}, s{lo}, {add}")
        a.I(f"s_addc_u32 s{d+1}, s{hi}, 0")
        a.I(f"s_and_b32 s{d+1}, s{d+1}, 0xffff")
    a.I(f"s_mov_b32 s{d+2}, {size}")
    a.I(f"s_mov_b32 s{d+3}, 0x20000")


def softmax_pm(D, T, sL, post=None):
    t0, t1, t2, t3 = T, T + 1, T + 2, T + 3
    L = []
    A = L.append
    A(f"v_max3_f32 v{t0}, v{D}, v{D+1}, v{D+2}")
    A(f"v_max3_f32 v{t1}, v{D+8}, v{D+9}, v{D+10}")
    A(f"v_max3_f32 v{t2}, v{D+3}, v{D+4}, v{D+5}")
    A(f"v_max3_f32 v{t3}, v{D+11}, v{D+12}, v{D+13}")
    A(f"v_max3_f32 v{t0}, v{D+6}, v{D+7}, v{t0}")
    A(f"v_max3_f32 v{t1}, v{D+14}, v{D+15}, v{t1}")
    A(f"v_max_f32 v{t0}, v{t0}, v{t2}")
    A(f"v_max_f32 v{t1}, v{t1}, v{t3}")
    A(f"v_permlane32_swap_b32 v{t0}, v{t1}")
    A(f"v_max_f32 v{t0}, v{t0}, v{t1}")
    A(f"v_mul_f32 v{t0}, {sL}, v{t0}")
    A(f"v_mov_b32 v{t1}, v{t0}")
    A(f"v_permlane32_swap_b32 v{t0}, v{t1}")
    for i in range(16):
        A(f"v_fma_f32 v{D+i}, v{D+i}, {sL}, -v{t0 if i < 8 else t1}")
    for i in range(16):
        A(f"v_exp_f32 v{D+i}, v{D+i}")
    A(f"v_add_f32 v{t0}, v{D}, v{D+1}")
    A(f"v_add_f32 v{t1}, v{D+8}, v{D+9}")
    A(f"v_add_f32 v{t2}, v{D+2}, v{D+3}")
    A(f"v_add_f32 v{t3}, v{D+10}, v{D+11}")
    for i in (4, 6):
        A(f"v_add_f32 v{t0}, v{t0}, v{D+i}")
        A(f"v_add_f32 v{t1}, v{t1}, v{D+8+i}")
        A(f"v_add_f32 v{t2}, v{t2}, v{D+i+1}")
        A(f"v_add_f32 v{t3}, v{t3}, v{D+8+i+1}")
    A(f"v_add_f32 v{t0}, v{t0}, v{t2}")
    A(f"v_add_f32 v{t1}, v{t1}, v{t3}")
    A(f"v_permlane32_swap_b32 v{t0}, v{t1}")
    A(f"v_add_f32 v{t0}, v{t0}, v{t1}")
    A(f"v_rcp_f32 v{t0}, v{t0}")
    if post is not None:
        A(f"v_mul_f32 v{t0}, v{t0}, v{post}")
    A(f"v_mov_b32 v{t1}, v{t0}")
    A(f"v_permlane32_swap_b32 v{t0}, v{t1}")
    for i in range(16):
        A(f"v_mul_f32 v{D+i}, v{D+i}, v{t0 if i < 8 else t1}")
    return L


def zipl(*lists):
    out = []
    n = max(len(l) for l in lists)
    for i in range(n):
        for l in lists:
            if i < len(l):
                out.append(l[i])
    return out


def emit(a, L):
    for f in L:
        if callable(f):
            f()
        else:
            a.I(f)


def pack8l(dst, src):
    return [f"v_cvt_pk_bf16_f32 v{dst+i}, v{src+2*i}, v{src+2*i+1}" for i in range(4)]


def pack8(a, dst, src):
    for i in range(4):
        a.I(f"v_cvt_pk_bf16_f32 v{dst+i}, v{src+2*i}, v{src+2*i+1}")


def k1_type(a, kind):
    ffn = kind == "ffn"
    P = f"k1_{kind}"
    XI = 4 if kind == "kv" else 2
    SLOT = 53376 if ffn else 49152
    WOFF = 32768 if kind == "kv" else 16384
    UOFF = 18432 + 128
    RSW = RS1 if ffn else RSQ
    r = Regs(5, VLIM, "v")
    vL = 0
    vTID = 1
    acc = [r.alloc(16, 4) for _ in range(5 if ffn else 4)]
    setbase = r.mark()
    fx = []; fw = []
    for _ in range(4):
        fx.append([r.alloc(4, 4) for _ in range(2)])
        fw.append([r.alloc(4, 4) for _ in range(3 if ffn else 2)])
    cs = [r.alloc(4, 4) for _ in range(3 if ffn else 2)]
    sel = r.alloc(4, 4)
    junk = r.alloc(4, 4)
    ones4 = r.alloc(4, 4) if not ffn else None
    adr = [[r.alloc(4, 4) for _ in range(4 if ffn else 2)] for _ in range(2)]
    st = [[r.alloc() for _ in range(4)] for _ in range(2)]
    vDE = r.alloc()
    t = [r.alloc() for _ in range(8)]
    u = [r.alloc() for _ in range(4)]
    vHM = r.alloc()
    vZ = r.alloc()
    vLO = r.alloc()
    kvr = [r.alloc() for _ in range(5)] + [r.alloc(4, 4) for _ in range(2)] if kind == "kv" else None
    if ffn:
        Mop = [adr[1][0], adr[1][1]]
        ex = [adr[1][2] + i for i in range(4)] + [adr[1][3] + i for i in range(4)]
    else:
        Mop = [r.alloc(4, 4) for _ in range(2)]
        ex = [r.alloc() for _ in range(8)]
    CR = cs
    if ffn:
        ones4 = r.alloc(4, 4)

    a.L(P)
    code_prefetch(a, t[0], junk, [(None, 24576), ("p2_start", 24576)], vTID)
    if ffn:
        a.I(f"s_and_b32 s{sT}, s{sJ}, 3")
        a.I(f"s_lshl_b32 s{sRB}, s{sROWQ}, 2")
        a.I(f"s_add_u32 s{sRB}, s{sRB}, s{sT}")
        a.I(f"s_lshr_b32 s{sT}, s{sJ}, 2")
        a.I(f"s_mul_i32 s{sG}, s{sCOLH}, 5")
        a.I(f"s_add_u32 s{sG}, s{sG}, s{sT}")
        a.I(f"s_lshl_b32 s{sT2}, s{sRB}, 17")
        a.I(f"s_mul_i32 s{sWO}, s{sG}, 288")
    elif kind == "kv":
        a.I(f"s_sub_u32 s{sT}, s{sJ}, 20")
        a.I(f"s_and_b32 s{sT2}, s{sT}, 1")
        a.I(f"s_lshl_b32 s{sRB}, s{sROWQ}, 1")
        a.I(f"s_add_u32 s{sRB}, s{sRB}, s{sT2}")
        a.I(f"s_lshr_b32 s{sT}, s{sT}, 1")
        a.I(f"s_lshl_b32 s{sG}, s{sCOLH}, 2")
        a.I(f"s_add_u32 s{sG}, s{sG}, s{sT}")
        a.I(f"s_lshl_b32 s{sT2}, s{sRB}, 18")
        a.I(f"s_lshl_b32 s{sWO}, s{sG}, 7")
        a.I(f"s_add_u32 s{sWO}, s{sWO}, 1024")
    else:
        a.I(f"s_sub_u32 s{sT}, s{sJ}, 28")
        a.I(f"s_lshl_b32 s{sRB}, s{sROWQ}, 2")
        a.I(f"s_add_u32 s{sRB}, s{sRB}, s{sT}")
        a.I(f"s_mov_b32 s{sG}, s{sCOLH}")
        a.I(f"s_lshl_b32 s{sT2}, s{sRB}, 17")
        a.I(f"s_lshl_b32 s{sWO}, s{sCOLH}, 9")
    a.I(f"s_lshr_b32 s{sPF}, s{sJ}, 2")
    a.I(f"s_add_u32 s{sPF}, s{sPF}, s{sJ}")
    a.I(f"s_and_b32 s{sRH}, s{sWV}, 1")
    a.I(f"v_lshrrev_b32 v{t[0]}, 3, v{vL}")
    a.I(f"v_and_b32 v{t[1]}, 7, v{vL}")
    a.I(f"s_lshl_b32 s{sT}, s{sWV}, 3")
    a.I(f"v_add_u32 v{t[2]}, s{sT}, v{t[0]}")
    a.I(f"v_bfe_u32 v{t[3]}, v{t[2]}, 1, 3")
    a.I(f"v_xor_b32 v{t[3]}, v{t[3]}, v{t[1]}")
    a.I(f"v_lshlrev_b32 v{t[3]}, 4, v{t[3]}")
    a.I(f"v_lshl_add_u32 v{vDX}, v{t[2]}, 10, v{t[3]}")
    if ffn:
        a.I(f"s_mov_b32 s{sT3}, {RS1}")
        a.I(f"s_mov_b32 s{sT}, 3641")
        for (dst, pat) in ((vDW, None), (vDE, 8)):
            if pat is None:
                src = vTID
            else:
                a.I(f"v_add_u32 v{t[4]}, 512, v{vL}")
                src = t[4]
            a.I(f"v_mul_u32_u24 v{t[5]}, s{sT}, v{src}")
            a.I(f"v_lshrrev_b32 v{t[5]}, 16, v{t[5]}")
            a.I(f"v_mul_u32_u24 v{t[6]}, 18, v{t[5]}")
            a.I(f"v_sub_u32 v{t[6]}, v{src}, v{t[6]}")
            a.I(f"v_lshlrev_b32 v{t[6]}, 4, v{t[6]}")
            a.I(f"v_mad_u32_u24 v{dst}, v{t[5]}, s{sT3}, v{t[6]}")
        a.I(f"v_add_u32 v{vDW}, s{sWO}, v{vDW}")
        a.I(f"s_mul_i32 s{sT}, s{sRH}, {32*RS1}")
        a.I(f"s_add_u32 s{sT}, s{sT}, s{sWO}")
        a.I(f"v_add_u32 v{vDE}, s{sT}, v{vDE}")
    else:
        a.I(f"v_and_b32 v{t[3]}, 2, v{t[0]}")
        a.I(f"v_lshlrev_b32 v{t[3]}, 1, v{t[3]}")
        a.I(f"v_xor_b32 v{t[3]}, v{t[3]}, v{t[1]}")
        a.I(f"v_lshlrev_b32 v{t[3]}, 4, v{t[3]}")
        a.I(f"s_mov_b32 s{sT3}, {RSQ}")
        a.I(f"v_mad_u32_u24 v{vDW}, v{t[2]}, s{sT3}, v{t[3]}")
        a.I(f"v_add_u32 v{vDW}, s{sWO}, v{vDW}")
    a.I(f"s_lshl_b32 s{sDST}, s{sWV}, 10")
    if ffn:
        a.I(f"s_mul_i32 s{sT}, s{sRH}, 9216")
        a.I(f"s_bitcmp1_b32 s{sWV}, 1")
        a.I(f"s_cselect_b32 s{sELDS}, {UOFF}, 0")
        a.I(f"s_add_u32 s{sELDS}, s{sELDS}, {WOFF + 8192}")
        a.I(f"s_add_u32 s{sELDS}, s{sELDS}, s{sT}")
    a.I("s_waitcnt lgkmcnt(0)")
    srd(a, dX, pX, pX + 1, (256 if kind == "kv" else 128) * 1024, add=f"s{sT2}")
    if ffn:
        srd(a, dWA, pW1, pW1 + 1, 512 * RS1)
        srd(a, dWB, pW3, pW3 + 1, 512 * RS1)
        a.I(f"s_bitcmp1_b32 s{sWV}, 1")
        a.I(f"s_cselect_b32 s{dWE}, s{dWB}, s{dWA}")
        a.I(f"s_cselect_b32 s{dWE+1}, s{dWB+1}, s{dWA+1}")
        a.I(f"s_mov_b32 s{dWE+2}, {512*RS1}")
        a.I(f"s_mov_b32 s{dWE+3}, 0x20000")
    else:
        srd(a, dWA, pWQKV, pWQKV + 1, 512 * RSQ)

    vm = []

    def vmwait(c):
        idx = max([i for i, tg in enumerate(vm) if tg == c], default=-1)
        n = len(vm) - 1 - idx
        del vm[:idx + 1]
        return n

    def dma_list(cls, c):
        so = (c % 3) * SLOT
        L = []
        for i in range(XI):
            L.append((sDST, so + 8192 * i, (sXO, 65536 * i), f"buffer_load_dwordx4 v{vDX}, {S(dX,4)}, %s offen lds"))
        if ffn:
            for (d, off) in ((dWA, 0), (dWB, UOFF)):
                for hi in range(2):
                    L.append((sDST, so + WOFF + off + 9216 * hi, (sWOc, 32 * RS1 * hi), f"buffer_load_dwordx4 v{vDW}, {S(d,4)}, %s offen lds"))
            if cls == 1:
                L.append((sELDS, so, (sWOc, 0), f"buffer_load_dwordx4 v{vDE}, {S(dWE,4)}, %s offen lds"))
        else:
            for rg in range(4 if kind == "q" else 2):
                g = 128 * rg if kind == "q" else 1024 * rg
                L.append((sDST, so + WOFF + 8192 * rg, (sWOc, g), f"buffer_load_dwordx4 v{vDW}, {S(dWA,4)}, %s offen lds"))
        out = []
        for n, (sb, m0c, goff, ins) in enumerate(L):
            def f(sb=sb, m0c=m0c, goff=goff, ins=ins, n=n):
                if n == 0:
                    a.I(f"s_and_b32 s{sT}, s{sPF}, {PMASK[c]}")
                    a.I(f"s_xor_b32 s{sT}, s{sT}, {c}")
                    a.I(f"s_lshl_b32 s{sXO}, s{sT}, 7")
                    a.I(f"s_mul_i32 s{sWOc}, s{sT}, {64*RSW}")
                a.I(f"s_add_u32 m0, s{sb}, {m0c}")
                a.I(f"s_add_u32 s{sT}, s{goff[0]}, {goff[1]}")
                a.I(ins % f"s{sT}")
                vm.append(c)
            out.append(f)
        return [] if OPT["nodma"] and c >= 2 else out

    classes = (0, 1)
    a.I(f"s_cmp_ge_u32 s{sWV}, 4")
    a.I(f"s_cbranch_scc1 {P}_c1")
    for cls in classes:
        C = f"{P}_c{cls}"
        a.L(C)
        del vm[:]
        extra = ffn and cls == 0
        NT = 3 if extra else 2
        emit(a, dma_list(cls, 0))
        if kind == "kv":
            srd(a, dWE, pWPHI, pWPHI + 1, 32 * 512)
            a.I(f"s_lshl_b32 s{sT}, s{sG}, 11")
            a.I(f"s_lshl_b32 s{sT2}, s{sRH}, 10")
            a.I(f"s_add_u32 s{sT}, s{sT}, s{sT2}")
            a.I(f"v_lshlrev_b32 v{vDE}, 4, v{vL}")
            a.I(f"s_add_u32 m0, s{sDST}, {3*SLOT}")
            a.I(f"buffer_load_dwordx4 v{vDE}, {S(dWE,4)}, s{sT} offen lds")
            vm.append("phi")
        a.I(f"s_lshr_b32 s{sCQ}, s{sWV}, 1")
        a.I(f"s_lshl_b32 s{sROT}, s{sRH}, 1")
        a.I(f"s_add_u32 s{sROT}, s{sROT}, s{sCQ}")
        a.I(f"s_and_b32 s{sROT}, s{sROT}, 3")
        a.I(f"v_and_b32 v{t[0]}, 31, v{vL}")
        a.I(f"v_lshrrev_b32 v{t[1]}, 5, v{vL}")
        a.I(f"v_bfe_u32 v{t[2]}, v{vL}, 1, 3")
        if kind == "kv":
            a.I(f"s_lshl_b32 s{sRT0}, s{sCQ}, 1")
            a.I(f"s_add_u32 s{sRT1}, s{sRT0}, 1")
        elif kind == "q":
            a.I(f"s_lshl_b32 s{sRT0}, s{sRH}, 1")
            a.I(f"s_add_u32 s{sRT1}, s{sRT0}, 1")
        else:
            a.I(f"s_and_b32 s{sT}, s{sCQ}, 1")
            a.I(f"s_lshl_b32 s{sRT0}, s{sRH}, 1")
            a.I(f"s_add_u32 s{sRT0}, s{sRT0}, s{sT}")
            a.I(f"s_xor_b32 s{sRT1}, s{sRT0}, 1")
        a.I(f"v_bfe_u32 v{t[4]}, v{vL}, 2, 2")
        a.I(f"v_lshl_add_u32 v{t[4]}, v{t[1]}, 3, v{t[4]}")
        a.I(f"v_and_b32 v{t[5]}, 3, v{vL}")
        a.I(f"v_lshlrev_b32 v{t[5]}, 3, v{t[5]}")
        a.I(f"v_bfe_u32 v{t[6]}, v{vL}, 4, 1")
        if ffn:
            a.I(f"s_mov_b32 s{sT3}, {UOFF}")
            a.I(f"v_mad_u32_u24 v{t[5]}, v{t[6]}, s{sT3}, v{t[5]}")
            a.I(f"v_mul_u32_u24 v{t[4]}, 288, v{t[4]}")
            a.I(f"v_add_u32 v{t[5]}, v{t[5]}, v{t[4]}")
            PITCH = 288
        else:
            if kind == "kv":
                a.I(f"s_lshl_b32 s{sT}, s{sRH}, 1")
            else:
                a.I(f"s_and_b32 s{sT}, s{sCQ}, 1")
                a.I(f"s_lshl_b32 s{sT}, s{sT}, 1")
            a.I(f"v_add_u32 v{t[6]}, s{sT}, v{t[6]}")
            a.I(f"v_and_b32 v{t[7]}, 2, v{t[4]}")
            a.I(f"v_xor_b32 v{t[6]}, v{t[6]}, v{t[7]}")
            a.I(f"v_lshl_add_u32 v{t[5]}, v{t[6]}, 5, v{t[5]}")
            a.I(f"v_lshl_add_u32 v{t[5]}, v{t[4]}, 7, v{t[5]}")
            PITCH = 128
        if ffn:
            a.I(f"s_lshl_b32 s{sT3}, s{sCQ}, 6")
            a.I(f"s_add_u32 s{sT3}, s{sT3}, {WOFF}")
        elif kind == "q":
            a.I(f"s_lshr_b32 s{sT3}, s{sCQ}, 1")
            a.I(f"s_lshl_b32 s{sT3}, s{sT3}, 14")
            a.I(f"s_add_u32 s{sT3}, s{sT3}, {WOFF}")
        else:
            a.I(f"s_mov_b32 s{sT3}, {WOFF}")
        for j in range(4):
            a.I(f"s_add_u32 s{sT}, s{sROT}, {j}")
            a.I(f"s_and_b32 s{sT}, s{sT}, 3")
            a.I(f"s_lshl_b32 s{sT2}, s{sT}, 1")
            a.I(f"v_add_u32 v{t[3]}, s{sT2}, v{t[1]}")
            a.I(f"v_xor_b32 v{t[3]}, v{t[3]}, v{t[2]}")
            a.I(f"v_lshlrev_b32 v{t[3]}, 4, v{t[3]}")
            a.I(f"v_lshl_add_u32 v{t[3]}, v{t[0]}, 7, v{t[3]}")
            a.I(f"s_lshl_b32 s{sT2}, s{sRT0}, 12")
            a.I(f"v_add_u32 v{adr[0][0]+j}, s{sT2}, v{t[3]}")
            if ffn:
                a.I(f"s_lshl_b32 s{sT2}, s{sRT1}, 12")
                a.I(f"v_add_u32 v{adr[0][2]+j}, s{sT2}, v{t[3]}")
            a.I(f"s_mul_i32 s{sT}, s{sT}, {16*PITCH}")
            a.I(f"s_add_u32 s{sT2}, s{sT}, s{sT3}")
            a.I(f"v_add_u32 v{adr[0][1]+j}, s{sT2}, v{t[5]}")
            if extra:
                a.I(f"s_add_u32 s{sT2}, s{sT}, {WOFF + 256}")
                a.I(f"v_add_u32 v{adr[0][3]+j}, s{sT2}, v{t[5]}")
        for k in range(len(adr[0]) if extra or not ffn else 3):
            for j in range(4):
                a.I(f"v_add_u32 v{adr[1][k]+j}, {2*SLOT}, v{adr[0][k]+j}")
        emit(a, dma_list(cls, 1))
        if kind == "kv":
            kv_addr(a, kvr, t, vL, SLOT)
        a.I(f"v_lshrrev_b32 v{t[0]}, 4, v{vL}")
        a.I(f"v_xor_b32 v{t[0]}, v{t[0]}, v{vL}")
        a.I(f"v_and_b32 v{t[0]}, 1, v{t[0]}")
        a.I(f"v_add_u32 v{t[0]}, -1, v{t[0]}")
        for i in range(4):
            a.I(f"v_and_b32 v{sel+i}, 0x3f803f80, v{t[0]}")
        for x in st[0] + st[1]:
            a.I(f"v_mov_b32 v{x}, 0")
        a.I(f"v_mov_b32 v{vHM}, 0xffff0000")
        a.I(f"v_lshrrev_b32 v{vLO}, 5, v{vL}")
        a.I(f"v_add_u32 v{vLO}, -1, v{vLO}")
        a.I(f"s_mov_b32 s{sL2E}, {LOG2E}")
        T1 = 32 if ffn else 8192
        H2 = 4 * PITCH
        NR = 8 if extra else 6

        def reads(c, j):
            if OPT["nolds"]:
                return []
            b = adr[1 if c % 3 == 2 else 0]
            o = SLOT if c % 3 == 1 else 0
            L = []
            L.append(f"ds_read_b128 {V(fx[j][0],4)}, v{b[0]+j} offset:{o}")
            L.append(f"ds_read_b64_tr_b16 {V(fw[j][0],2)}, v{b[1]+j} offset:{o}")
            L.append(f"ds_read_b64_tr_b16 {V(fw[j][0]+2,2)}, v{b[1]+j} offset:{o+H2}")
            L.append(f"ds_read_b64_tr_b16 {V(fw[j][1],2)}, v{b[1]+j} offset:{o+T1}")
            L.append(f"ds_read_b64_tr_b16 {V(fw[j][1]+2,2)}, v{b[1]+j} offset:{o+T1+H2}")
            if ffn:
                L.append(f"ds_read_b128 {V(fx[j][1],4)}, v{b[2]+j} offset:{o}")
            else:
                L.append(f"ds_read_b128 {V(fx[j][1],4)}, v{b[0]+j} offset:{o+4096}")
            if extra:
                L.append(f"ds_read_b64_tr_b16 {V(fw[j][2],2)}, v{b[3]+j} offset:{o}")
                L.append(f"ds_read_b64_tr_b16 {V(fw[j][2]+2,2)}, v{b[3]+j} offset:{o+H2}")
            return L

        tiles = [(0, 0), (0, 1), (1, 0), (1, 1)] + ([(0, 2)] if extra else [])

        def m1(j, n, first=False):
            rt, tl = tiles[n]
            return f"{MFMA} {V(acc[n],16)}, {V(fw[j][tl],4)}, {V(fx[j][rt],4)}, {'0' if first else V(acc[n],16)}"

        def cs16(c, j):
            if OPT["nodot"]:
                return []
            if kind == "kv":
                tls = (0, 1) if j == 0 else ()
            else:
                tls = {0: (0, 1, 2) if extra else (0, 1), 1: (0, 1)}.get(j, ())
            return [f"{M16} {V(cs[tl],4)}, {V(fw[j][tl],4)}, {V(sel,4)}, {'0' if (c == 0 and j == 0) else V(cs[tl],4)}" for tl in tls]

        def mf(c, j, with_cs=True):
            if OPT["nomfma"]:
                return ["s_nop 0"] * 4
            L = [m1(j, n, first=(c == 0 and j == 0)) for n in range(len(tiles))]
            if with_cs:
                for i, x in enumerate(cs16(c, j)):
                    L.insert(2 * i + 1, x)
            return L

        def xstats(j):
            L = []
            for i in range(4):
                for rt in range(2):
                    lo, hi = u[2 * rt], u[2 * rt + 1]
                    L.append(f"v_lshlrev_b32 v{lo}, 16, v{fx[j][rt]+i}")
                    L.append(f"v_and_b32 v{hi}, v{vHM}, v{fx[j][rt]+i}")
                for rt in range(2):
                    lo, hi = u[2 * rt], u[2 * rt + 1]
                    L.append(f"v_add_f32 v{st[rt][0]}, v{st[rt][0]}, v{lo}")
                    L.append(f"v_add_f32 v{st[rt][1]}, v{st[rt][1]}, v{hi}")
                    L.append(f"v_fmac_f32 v{st[rt][2]}, v{lo}, v{lo}")
                    L.append(f"v_fmac_f32 v{st[rt][3]}, v{hi}, v{hi}")
            return [] if OPT["nodot"] else L

        SC = L_SC
        CS = SC + (8192 if kind == "kv" else 4096)
        slot_x = sRH if kind == "kv" else sCQ
        slot_c = sCQ if kind == "kv" else sRH
        TD = 1 if ffn else 2

        def exaddr():
            a.I(f"v_and_b32 v{t[0]}, 31, v{vL}")
            a.I(f"v_lshrrev_b32 v{t[1]}, 5, v{vL}")
            a.I(f"v_lshlrev_b32 v{t[2]}, 5, v{t[0]}")
            a.I(f"v_lshlrev_b32 v{t[3]}, 2, v{t[1]}")
            a.I(f"s_lshl_b32 s{sT}, s{slot_x}, 3")
            for rt, srt in ((0, sRT0), (1, sRT1)):
                a.I(f"s_lshl_b32 s{sT2}, s{srt}, 10")
                a.I(f"s_add_u32 s{sT2}, s{sT2}, {SC}")
                a.I(f"v_add_u32 v{ex[rt]}, s{sT2}, v{t[2]}")
                a.I(f"v_add3_u32 v{ex[2+rt]}, v{ex[rt]}, v{t[3]}, s{sT}")
            if ffn:
                a.I(f"s_lshl_b32 s{sTI}, s{sCQ}, 1")
            elif kind == "q":
                a.I(f"s_lshr_b32 s{sTI}, s{sCQ}, 1")
                a.I(f"s_lshl_b32 s{sTI}, s{sTI}, 2")
                a.I(f"s_and_b32 s{sT2}, s{sCQ}, 1")
                a.I(f"s_add_u32 s{sTI}, s{sTI}, s{sT2}")
            else:
                a.I(f"s_mov_b32 s{sTI}, s{sRH}")
            a.I(f"s_lshl_b32 s{sT2}, s{sTI}, 9")
            a.I(f"s_add_u32 s{sT2}, s{sT2}, {CS}")
            a.I(f"v_lshlrev_b32 v{t[4]}, 2, v{t[0]}")
            a.I(f"v_add_u32 v{ex[4]}, s{sT2}, v{t[4]}")
            a.I(f"v_and_b32 v{t[5]}, 1, v{vL}")
            a.I(f"v_lshlrev_b32 v{t[5]}, 6, v{t[5]}")
            a.I(f"v_lshrrev_b32 v{t[6]}, 4, v{vL}")
            a.I(f"v_lshl_add_u32 v{t[5]}, v{t[6]}, 4, v{t[5]}")
            a.I(f"s_lshl_b32 s{sT}, s{slot_c}, 7")
            a.I(f"s_add_u32 s{sT2}, s{sT2}, s{sT}")
            a.I(f"v_add_u32 v{ex[5]}, s{sT2}, v{t[5]}")
            if extra:
                a.I(f"v_add_u32 v{ex[6]}, {CS + 8*512}, v{t[4]}")
                a.I(f"s_lshl_b32 s{sT2}, s{sROT}, 7")
                a.I(f"s_add_u32 s{sT2}, s{sT2}, {CS + 8*512}")
                a.I(f"v_add_u32 v{ex[7]}, s{sT2}, v{t[5]}")

        def outsetup():
            if ffn:
                for rt, srt, d in ((0, sRT0, dO0), (1, sRT1, dO1)):
                    a.I(f"s_lshl_b32 s{sT}, s{sRB}, 2")
                    a.I(f"s_add_u32 s{sT}, s{sT}, s{srt}")
                    a.I(f"s_mul_i32 s{sT}, s{sT}, {86*1024}")
                    srd(a, d, pWS, pWS + 1, 86 * 1024, add=f"s{sT}")
                a.I(f"s_mul_i32 s{sO[1]}, s{sG}, {9*1024}")
                a.I(f"s_lshl_b32 s{sO[0]}, s{sCQ}, 11")
                a.I(f"s_add_u32 s{sO[0]}, s{sO[0]}, s{sO[1]}")
                a.I(f"s_add_u32 s{sO[1]}, s{sO[1]}, {8*1024}")
            elif kind == "q":
                srd(a, dO0, pWS, pWS + 1, 64 * 32 * 1024, add=QB)
                a.I(f"s_lshl_b32 s{sT3}, s{sTI}, 1")
                a.I(f"s_lshl_b32 s{sT}, s{sCOLH}, 4")
                a.I(f"s_add_u32 s{sT3}, s{sT3}, s{sT}")
                for srt, so in ((sRT0, sO[0]), (sRT1, sO[2])):
                    a.I(f"s_lshl_b32 s{sT}, s{sRB}, 2")
                    a.I(f"s_add_u32 s{sT}, s{sT}, s{srt}")
                    a.I(f"s_lshl_b32 s{sT}, s{sT}, 5")
                    a.I(f"s_add_u32 s{sT}, s{sT}, s{sT3}")
                    a.I(f"s_lshl_b32 s{so}, s{sT}, 10")
                a.I(f"s_add_u32 s{sO[1]}, s{sO[0]}, 4096")
                a.I(f"s_add_u32 s{sO[3]}, s{sO[2]}, 4096")
            else:
                srd(a, dO0, pWS, pWS + 1, 8 * 32 * 4096, add=KVB)
                a.I(f"s_lshl_b32 s{sT}, s{sRB}, 5")
                a.I(f"s_lshl_b32 s{sT3}, s{sG}, 2")
                a.I(f"s_add_u32 s{sT}, s{sT}, s{sT3}")
                a.I(f"s_lshl_b32 s{sT3}, s{sRH}, 1")
                a.I(f"s_add_u32 s{sT}, s{sT}, s{sT3}")
                a.I(f"s_lshl_b32 s{sT}, s{sT}, 12")
                a.I(f"s_lshl_b32 s{sT2}, s{sCQ}, 10")
                a.I(f"s_add_u32 s{sO[0]}, s{sT}, s{sT2}")
                a.I(f"s_add_u32 s{sO[1]}, s{sO[0]}, 4096")

        def capture(fn):
            n0 = len(a.items)
            fn()
            L = [it.text for it in a.items[n0:]]
            del a.items[n0:]
            return L

        if not ffn:
            exaddr()
        outsetup()
        p2_common_setup(a, cls)
        F_ = ones4
        for i in range(4):
            a.I(f"v_mov_b32 v{F_+i}, -1")
        fills = []
        if kind == "kv":
            fills = [(dO0, sO[0], 0), (dO0, sO[1], 0)]
        if cls == 1:
            fills += [(dOf0, sQ0, 0), (dOf0, sQ1, 0)]
        fq = []
        for (d, so, o) in fills:
            def ff(d=d, so=so, o=o):
                a.I(f"buffer_store_dwordx4 {V(F_,4)}, v{vO}, {S(d,4)}, s{so} offen offset:{o}{STF}")
                vm.append("fill")
            fq.append(ff)
        if kind != "kv":
            a.I(f"s_lshl_b32 s{sFL}, s{sRB}, 1")
            a.I(f"s_add_u32 s{sFL}, s{sFL}, s{sRH}")
            a.I(f"s_lshl_b32 s{sFL}, s{sFL}, 6")
            a.I(f"s_lshl_b32 s{sT}, s{sG}, 2")
            a.I(f"s_add_u32 s{sFL}, s{sFL}, s{sT}")
            a.I(f"s_add_u32 s{sFL}, s{sFL}, s{sCQ}")
            if kind == "q":
                a.I(f"s_add_u32 s{sFL}, s{sFL}, 48")
            a.I(f"s_lshl_b32 s{sFL}, s{sFL}, 2")
            a.I(f"v_mov_b32 v{vZ}, 0")

            def fz():
                a.I("s_mov_b64 exec, 1")
                a.I(f"buffer_store_dword v{vZ}, v{vZ}, {S(dFL,4)}, s{sFL} offen sc1")
                a.I("s_mov_b64 exec, -1")
                vm.append("fill")
            fq.insert(0, fz)
        FPC = (len(fq) + OPT["fillch"] - 1) // OPT["fillch"]
        a.I(f"v_mov_b32 v{t[0]}, {L_CNT}")
        a.I(f"v_mov_b32 v{t[1]}, 0")
        a.I(f"ds_write_b32 v{t[0]}, v{t[1]}")
        a.I(f"ds_write_b32 v{t[0]}, v{t[1]} offset:4")
        stamp(a, 1)
        carry = []
        late = OPT["stagger"] and cls == 1
        E1 = RGN[0][1] if (cls == 0 and OPT["e1"]) else 0
        E2 = E1 + (RGN[1][1] if (cls == 0 and kind != "kv" and OPT["e2"]) else 0)

        def earlyB(lo, hi):
            L = []
            for tb in range(lo, hi):
                for f in issueB_parts(a, tb):
                    L.append(lambda f=f: (f(), vm.append("eb")))
            return L
        for c in range(7):
            a.I(f"s_waitcnt vmcnt({vmwait(c)}) lgkmcnt(0)")
            if c == 0:
                stamp(a, 2)
            if c == OPT["fillch"] + 2:
                assert "fill" not in vm
            a.I("s_barrier")
            if c == OPT["fillch"] + 2 and cls == 0:
                assert "fill" not in vm
                a.I(f"s_lshl_b32 s{sT}, s{sWV}, 12")
                a.I(f"v_mov_b32 v{t[0]}, 0")
                a.I(f"v_mov_b32 v{t[1]}, 1")
                a.I("s_mov_b64 exec, 1")
                a.I(f"buffer_atomic_add v{t[1]}, v{t[0]}, {S(dDbg,4)}, s{sT} offen")
                a.I("s_mov_b64 exec, -1")
                vm.append("atomic")
            dm = dma_list(cls, c + 2) if c + 2 < 8 else []
            x0 = xstats(0)
            if kind == "kv":
                x1 = xstats(1)
                pA, pB, pC, pD = carry, x0[:12], x0[12:36], x0[36:] + x1[:16]
                carry = x1[16:]
                if c == 6:
                    pD = x0[36:] + x1; carry = []
            else:
                pA, pB, pC, pD = [], x0[:12], x0[12:32], x0[32:]
            xtraB = []; xtraD = []
            if c < OPT["fillch"]:
                xtraD = fq[c * FPC:(c + 1) * FPC]
            if c == 5:
                L = capture(lambda: w2_prefetch(a, t[1], junk, vTID))
                npf = sum(1 for x in L if x.startswith("buffer"))
                xtraD = L + [lambda npf=npf: vm.extend(["pf"] * npf)] + capture(lambda: p2_late_setup(a, cls, t))
            if c == 6:
                xtraB = capture(exaddr) if ffn else []
                dm = earlyB(0, E1)
            if c == OPT["pfc"] and cls == 1 and OPT["pfw2"]:
                assert OPT["rotr"] == 0
                xtraB = capture(lambda: w2_l2_prefetch(a, t[1], junk)) + [lambda: vm.append("pf")]
            if c == 1 and kind == "kv":
                for hd in range(2):
                    xtraD.append(f"ds_read_b64_tr_b16 {V(kvr[5+hd],2)}, v{kvr[3]} offset:{512*hd}")
                    xtraD.append(f"ds_read_b64_tr_b16 {V(kvr[5+hd]+2,2)}, v{kvr[3]} offset:{512*hd+256}")
            dA, dC = ([], dm) if (late and c) else (dm, [])
            if c == 0:
                emit(a, reads(c, 0) + dm + reads(c, 1))
                a.I(f"s_waitcnt lgkmcnt({NR})")
                emit(a, pB)
            else:
                interleave(a, mf(c - 1, 2), zipl(reads(c, 0), pA, dA))
                g = mf(c - 1, 3)
                h = (len(g) + 1) // 2
                interleave(a, g[:h], reads(c, 1) + xtraB)
                a.I(f"s_waitcnt lgkmcnt({NR})")
                interleave(a, g[h:], pB)
            interleave(a, mf(c, 0), zipl(reads(c, 2), pC, dC))
            a.I(f"s_waitcnt lgkmcnt({NR})")
            interleave(a, mf(c, 1), reads(c, 3) + (spread(pD, xtraD) if c < 5 and pD else pD + xtraD))
        stamp(a, 3)
        a.I(f"s_waitcnt vmcnt({vmwait(7)}) lgkmcnt(0)")
        a.I("s_barrier")
        pre = reads(7, 0) + reads(7, 1)
        eb2 = earlyB(E1, E2)
        g = mf(6, 2)
        a.I(g[0])
        emit(a, pre)
        interleave(a, g[1:], eb2[:6])
        a.I("s_waitcnt lgkmcnt(0)")
        g = mf(6, 3)
        cl = cs16(7, 0) + cs16(7, 1)
        g = cl + g if not OPT["nomfma"] else g
        interleave(a, g, spread(zipl(reads(7, 2), xstats(0) + (xstats(1) if kind == "kv" else [])), eb2[6:]))
        emit(a, reads(7, 3))
        f3 = []
        for rt in range(2):
            f3.append(f"v_add_f32 v{st[rt][0]}, v{st[rt][0]}, v{st[rt][1]}")
            f3.append(f"v_add_f32 v{st[rt][2]}, v{st[rt][2]}, v{st[rt][3]}")
        for tl in range(2):
            f3.append(f"ds_write_b128 v{ex[5]}, {V(cs[tl],4)} offset:{512*TD*tl}")
        if extra:
            f3.append(f"ds_write_b128 v{ex[7]}, {V(cs[2],4)}")
        for rt in range(2):
            f3.append(f"v_permlane32_swap_b32 v{st[rt][0]}, v{st[rt][2]}")
        for rt in range(2):
            f3.append(f"v_add_f32 v{st[rt][0]}, v{st[rt][0]}, v{st[rt][2]}")
        for rt in range(2):
            f3.append(f"ds_write_b32 v{ex[2+rt]}, v{st[rt][0]}")
        g0 = mf(7, 0, with_cs=False)
        interleave(a, g0[:2], f3)
        emit(a, g0[2:])
        a.I("s_waitcnt lgkmcnt(0)")
        a.I("s_barrier")
        R = [fx[0][0], fx[0][1], fw[0][0], fw[0][1]]
        for rt in range(2):
            a.I(f"ds_read_b128 {V(R[2*rt],4)}, v{ex[rt]}")
            if kind != "kv":
                a.I(f"ds_read_b128 {V(R[2*rt+1],4)}, v{ex[rt]} offset:16")
        for tl in range(NT):
            ns = 4 if (kind == "kv" or tl == 2) else 2
            for sl in range(ns):
                if tl < 2:
                    a.I(f"ds_read_b32 v{CR[tl]+sl}, v{ex[4]} offset:{512*TD*tl + 128*sl}")
                else:
                    a.I(f"ds_read_b32 v{CR[tl]+sl}, v{ex[6]} offset:{128*sl}")
        vCN = u[0]
        a.I(f"v_mov_b32 v{u[1]}, 0")
        a.I(f"buffer_load_dword v{vCN}, v{u[1]}, {S(dDbg,4)}, 0 offen sc1")
        mark = len(a.items)
        eb = []
        f4 = []
        if kind == "kv":
            pass
        interleave(a, mf(7, 1, with_cs=False), f4)
        a.I("s_waitcnt lgkmcnt(0)")
        rstd = [st[0][0], st[1][0]]
        ir2 = [st[0][1], st[1][1]]
        rl = [st[0][2], st[1][2]]
        ml = []
        for rt in range(2):
            A_, B_ = R[2 * rt], R[2 * rt + 1]
            M = Mop[rt]
            L = []
            L.append(f"v_add_f32 v{A_}, v{A_}, v{A_+2}")
            L.append(f"v_add_f32 v{A_+1}, v{A_+1}, v{A_+3}")
            if kind != "kv":
                L.append(f"v_add_f32 v{B_}, v{B_}, v{B_+2}")
                L.append(f"v_add_f32 v{B_+1}, v{B_+1}, v{B_+3}")
                L.append(f"v_add_f32 v{A_}, v{A_}, v{B_}")
                L.append(f"v_add_f32 v{A_+1}, v{A_+1}, v{B_+1}")
            L.append(f"v_mul_f32 v{A_}, 0xbb000000, v{A_}")
            L.append(f"v_mul_f32 v{A_+1}, 0x3b000000, v{A_+1}")
            L.append(f"v_cvt_pk_bf16_f32 v{M}, v{A_}, v{A_}")
            L.append(f"v_fma_f32 v{A_+1}, -v{A_}, v{A_}, v{A_+1}")
            L.append(f"v_and_b32 v{A_+2}, v{vHM}, v{M}")
            L.append(f"v_max_f32 v{A_+1}, 0, v{A_+1}")
            L.append(f"v_sub_f32 v{A_+2}, v{A_}, v{A_+2}")
            L.append(f"v_add_f32 v{ir2[rt]}, 0x3727c5ac, v{A_+1}")
            L.append(f"v_cvt_pk_bf16_f32 v{M+1}, v{A_+2}, 0")
            L.append(f"v_rsq_f32 v{rstd[rt]}, v{ir2[rt]}")
            L.append(f"v_and_b32 v{M}, v{M}, v{vLO}")
            L.append(f"v_and_b32 v{M+1}, v{M+1}, v{vLO}")
            L.append(f"v_mov_b32 v{M+2}, 0")
            L.append(f"v_mov_b32 v{M+3}, 0")
            if ffn:
                L.append(f"v_mul_f32 v{rl[rt]}, 0xbfb8aa3b, v{rstd[rt]}")
            if kind == "kv":
                L.append(f"v_mul_f32 v{rl[rt]}, 0x3fb8aa3b, v{rstd[rt]}")
                L.append(f"v_mul_f32 v{ir2[rt]}, v{ir2[rt]}, v{rstd[rt]}")
            ml.append(L)
        for n in range(NT):
            c_ = CR[n]
            L = []
            L.append(f"v_add_f32 v{c_}, v{c_}, v{c_+1}")
            if kind == "kv" or n == 2:
                L.append(f"v_add_f32 v{c_+2}, v{c_+2}, v{c_+3}")
                L.append(f"v_add_f32 v{c_}, v{c_}, v{c_+2}")
            L.append(f"v_cvt_pk_bf16_f32 v{c_+1}, v{c_}, v{c_}")
            L.append(f"v_and_b32 v{c_+1}, v{vHM}, v{c_+1}")
            L.append(f"v_sub_f32 v{c_+1}, v{c_}, v{c_+1}")
            L.append(f"v_cvt_pk_bf16_f32 v{c_}, v{c_}, v{c_+1}")
            L.append(f"v_mov_b32 v{c_+1}, v{c_}")
            L.append(f"v_mov_b32 v{c_+2}, 0")
            L.append(f"v_mov_b32 v{c_+3}, 0")
            ml.append(L)
        interleave(a, mf(7, 2), zipl(*ml))
        stamp(a, 4)

        def fin(n):
            rt, tl = tiles[n]
            return [m1(3, n), f"{MFMA} {V(acc[n],16)}, {V(CR[tl],4)}, {V(Mop[rt],4)}, {V(acc[n],16)}"]

        if ffn:
            EB = [fx[1][0], fx[2][0]]
            assert fx[1][1] == fx[1][0] + 4 and fx[2][1] == fx[2][0] + 4
            dst = [(dO0, sO[0], 0), (dO0, sO[0], 1024), (dO1, sO[0], 0), (dO1, sO[0], 1024), (dO0, sO[1], 0)]

            def epi(n):
                c_ = acc[n]; rt = tiles[n][0]; E = EB[n & 1]
                d, so, off = dst[n]
                L = []
                L += [f"v_mul_f32 v{E+i}, v{c_+i}, v{rl[rt]}" for i in range(8)]
                L += [f"v_exp_f32 v{E+i}, v{E+i}" for i in range(8)]
                L += [f"v_mul_f32 v{c_+i}, v{c_+i}, v{c_+8+i}" for i in range(8)]
                L += [f"v_fma_f32 v{E+i}, v{E+i}, v{ir2[rt]}, v{ir2[rt]}" for i in range(8)]
                L += [f"v_rcp_f32 v{E+i}, v{E+i}" for i in range(8)]
                L += [f"v_mul_f32 v{c_+i}, v{c_+i}, v{E+i}" for i in range(8)]
                L += pack8l(c_ + 8, c_)
                L.append(f"buffer_store_dwordx4 {V(c_+8,4)}, v{vO}, {S(d,4)}, s{so} offen offset:{off}{STF}")
                return L
        elif kind == "q":
            so_ = sO

            def epi(n):
                c_ = acc[n]; rt = tiles[n][0]
                L = [f"v_mul_f32 v{c_+i}, v{c_+i}, v{rstd[rt]}" for i in range(16)]
                L += pack8l(c_, c_) + pack8l(c_ + 4, c_ + 8)
                L.append(f"buffer_store_dwordx4 {V(c_,4)}, v{vO}, {S(dO0,4)}, s{so_[n]} offen{STF}")
                L.append(f"buffer_store_dwordx4 {V(c_+4,4)}, v{vO}, {S(dO0,4)}, s{so_[n]} offen offset:1024{STF}")
                return L
        if kind != "kv":
            nt = len(tiles)
            emit(a, fin(0) + fin(1))
            per = (len(eb) + nt - 1) // nt
            for n in range(nt):
                L = spread(epi(n), eb[n * per:(n + 1) * per])
                if n + 2 < nt:
                    interleave(a, fin(n + 2), L)
                else:
                    emit(a, L)
        else:
            kv_epilogue(a, locals())
        stamp(a, 5)
        if kind != "kv":
            a.I("s_barrier")
        early = E2
        if kind != "kv":
            a.I(f"v_mov_b32 v{u[2]}, 1")
            a.I(f"s_waitcnt vmcnt(0)")
            a.I("s_mov_b64 exec, 1")
            a.I(f"buffer_store_dword v{u[2]}, v{vZ}, {S(dFL,4)}, s{sFL} offen sc1")
            a.I("s_mov_b64 exec, -1")
        nv = sum(1 for it in a.items[mark:] if not isinstance(it, tuple) and it.cls == "vmem")
        a.I(f"s_waitcnt vmcnt({min(nv, 63)})")
        a.I(f"v_readfirstlane_b32 s{sT}, v{vCN}")
        a.I(f"s_cmp_ge_u32 s{sT}, 256")
        tgt = "p2_prod" if cls == 1 else (f"p2_gemm{early}")
        a.I(f"s_cbranch_scc1 {tgt}")
        a.I(f"s_mov_b32 s{sCNT}, 0")
        a.L(f"{C}_cw")
        a.I("s_sleep 4")
        a.I(f"buffer_load_dword v{vCN}, v{u[1]}, {S(dDbg,4)}, 0 offen sc1")
        a.I("s_waitcnt vmcnt(0)")
        a.I(f"v_readfirstlane_b32 s{sT}, v{vCN}")
        a.I(f"s_add_u32 s{sCNT}, s{sCNT}, 1")
        a.I(f"s_cmp_gt_u32 s{sCNT}, 0x8000")
        a.I(f"s_cbranch_scc1 {tgt}")
        a.I(f"s_cmp_ge_u32 s{sT}, 256")
        a.I(f"s_cbranch_scc0 {C}_cw")
        a.I(f"s_branch {tgt}")


KV_PIT = 112
KV_UNIT = 32 * KV_PIT
KV_WSC = 4 * KV_UNIT


def kv_addr(a, kvr, t, vL, SLOT):
    aWr, aPh, aV, aP, aPad = kvr[:5]
    PIT = KV_PIT
    a.I(f"v_and_b32 v{t[1]}, 31, v{vL}")
    a.I(f"v_lshrrev_b32 v{t[2]}, 5, v{vL}")
    a.I(f"v_bfe_u32 v{t[3]}, v{vL}, 2, 2")
    a.I(f"v_and_b32 v{t[4]}, 3, v{vL}")
    a.I(f"v_bfe_u32 v{t[5]}, v{vL}, 4, 1")
    a.I(f"s_mul_i32 s{sT}, s{sWV}, {KV_WSC}")
    a.I(f"v_mul_u32_u24 v{aPad}, {PIT}, v{t[1]}")
    a.I(f"v_add_u32 v{aPad}, s{sT}, v{aPad}")
    a.I(f"v_lshl_add_u32 v{aWr}, v{t[2]}, 4, v{aPad}")
    a.I(f"v_and_b32 v{t[6]}, 1, v{t[4]}")
    a.I(f"v_lshlrev_b32 v{t[6]}, 4, v{t[6]}")
    a.I(f"v_lshrrev_b32 v{t[7]}, 1, v{t[4]}")
    a.I(f"v_lshl_add_u32 v{t[6]}, v{t[7]}, 3, v{t[6]}")
    a.I(f"v_lshl_add_u32 v{t[7]}, v{t[2]}, 3, v{t[3]}")
    a.I(f"v_mul_u32_u24 v{t[7]}, {PIT}, v{t[7]}")
    a.I(f"v_add_u32 v{t[7]}, s{sT}, v{t[7]}")
    a.I(f"v_lshl_add_u32 v{aPh}, v{t[5]}, 5, v{t[7]}")
    a.I(f"v_add_u32 v{aPh}, v{aPh}, v{t[6]}")
    a.I(f"v_add_u32 v{t[6]}, 64, v{t[6]}")
    a.I(f"v_cmp_eq_u32 vcc, 0, v{t[5]}")
    a.I(f"v_mov_b32 v{aV}, 96")
    a.I(f"v_cndmask_b32 v{aV}, v{aV}, v{t[6]}, vcc")
    a.I(f"v_add_u32 v{aV}, v{aV}, v{t[7]}")
    a.I(f"v_lshl_add_u32 v{aP}, v{t[2]}, 2, v{t[3]}")
    a.I(f"v_lshlrev_b32 v{aP}, 5, v{aP}")
    a.I(f"v_lshl_add_u32 v{aP}, v{t[4]}, 3, v{aP}")
    a.I(f"s_lshl_b32 s{sT2}, s{sWV}, 10")
    a.I(f"s_add_u32 s{sT2}, s{sT2}, {3*SLOT}")
    a.I(f"v_add_u32 v{aP}, s{sT2}, v{aP}")


def kv_epilogue(a, e):
    acc, t, rstd, vL, fin, kvr = e["acc"], e["t"], e["rstd"], e["vL"], e["fin"], e["kvr"]
    setbase, adr, u = e["setbase"], e["adr"], e["u"]
    aWr, aPh, aV, aP, aPad = kvr[:5]
    WP = kvr[5:7]
    PIT, UNIT, WSC = KV_PIT, KV_UNIT, KV_WSC
    D = [setbase + 16 * n for n in range(4)]
    T4 = [adr[0][0], adr[0][1], adr[1][0], adr[1][1]]
    sgn = t[1]

    rl, std, sel = e["rl"], e["ir2"], e["sel"]

    def pack(n):
        c_ = acc[n]
        return pack8l(c_, c_) + pack8l(c_ + 4, c_ + 8)
    pre = [f"v_bfe_u32 v{sgn}, v{vL}, 4, 1", f"v_mul_u32_u24 v{sgn}, 0x8000, v{sgn}", f"v_lshl_or_b32 v{sgn}, v{sgn}, 16, v{sgn}"]
    for hd in range(2):
        pre += [f"v_xor_b32 v{WP[hd]+i}, v{WP[hd]+i}, v{sgn}" for i in range(4)]
    for rt in range(2):
        pre += [f"v_cvt_pk_bf16_f32 v{sel+2*rt}, v{std[rt]}, v{std[rt]}", f"v_mov_b32 v{sel+2*rt+1}, v{sel+2*rt}"]
    for n in range(4):
        for o in (96, 104):
            pre.append(f"ds_write_b64 v{aPad}, {V(sel+2*(n>>1),2)} offset:{n*UNIT+o}")
    interleave(a, fin(0) + fin(2), pre)
    interleave(a, fin(1) + fin(3), pack(0) + pack(2))
    phim = [f"{MFMA} {V(D[n],16)}, {V(WP[n&1],4)}, {V(acc[2*(n>>1)]+4*(n&1),4)}, 0" for n in range(4)]
    emit(a, phim)
    stamp(a, 11)
    for rt in range(2):
        emit(a, pack(2 * rt + 1))
        for hd in range(2):
            a.I(f"ds_write_b128 v{aWr}, {V(acc[2*rt+1]+4*hd,4)} offset:{(2*rt+hd)*UNIT+64}")

    def unit(n):
        L = softmax_pm(D[n], T4[n], f"v{rl[n>>1]}", post=rstd[n >> 1]) + pack8l(D[n], D[n]) + pack8l(D[n] + 4, D[n] + 8)
        L.append(f"ds_write_b128 v{aWr}, {V(D[n],4)} offset:{n*UNIT}")
        L.append(f"ds_write_b128 v{aWr}, {V(D[n]+4,4)} offset:{n*UNIT+32}")
        return L
    KV = [acc[0], acc[2]]
    F = [acc[1], acc[3]]

    def trreads(n):
        f = F[n & 1]
        L = []
        for kk in range(2):
            o = n * UNIT + kk * 16 * PIT
            L.append(f"ds_read_b64_tr_b16 {V(f+4*kk,2)}, v{aPh} offset:{o}")
            L.append(f"ds_read_b64_tr_b16 {V(f+4*kk+2,2)}, v{aPh} offset:{o+4*PIT}")
            L.append(f"ds_read_b64_tr_b16 {V(f+8+4*kk,2)}, v{aV} offset:{o}")
            L.append(f"ds_read_b64_tr_b16 {V(f+8+4*kk+2,2)}, v{aV} offset:{o+4*PIT}")
        return L

    def kvm(n):
        f = F[n & 1]; hd = n & 1
        L = []
        for kk in range(2):
            cc = "0" if (n < 2 and kk == 0) else V(KV[hd], 16)
            L.append(f"{MFMA} {V(KV[hd],16)}, {V(f+4*kk,4)}, {V(f+8+4*kk,4)}, {cc}")
        return L
    emit(a, zipl(unit(0), unit(1)))
    stamp(a, 12)
    u23 = zipl(unit(2), unit(3))
    emit(a, u23[:24])
    a.I("s_waitcnt lgkmcnt(0)")
    emit(a, spread(u23[24:90], trreads(0) + trreads(1)))
    a.I("s_waitcnt lgkmcnt(0)")
    interleave(a, kvm(0) + kvm(1), u23[90:])
    a.I("s_waitcnt lgkmcnt(0)")
    stamp(a, 13)
    emit(a, trreads(2) + trreads(3))
    a.I(f"s_mul_i32 s{sT}, s{sWV}, {WSC}")
    a.I(f"v_add_u32 v{aWr}, s{sT}, v{vO}")
    a.I(f"s_mul_i32 s{sT}, s{sRH}, {WSC}")
    a.I(f"s_lshl_b32 s{sT2}, s{sCQ}, 10")
    a.I(f"s_add_u32 s{sT}, s{sT}, s{sT2}")
    a.I(f"v_add_u32 v{aPad}, s{sT}, v{vO}")
    a.I(f"v_add_u32 v{aP}, {4*WSC}, v{aPad}")
    a.I("s_waitcnt lgkmcnt(8)")
    emit(a, kvm(2))
    a.I("s_waitcnt lgkmcnt(0)")
    emit(a, kvm(3))
    for hd in range(2):
        for q in range(4):
            a.I(f"ds_write_b128 v{aWr}, {V(KV[hd]+4*q,4)} offset:{hd*4096+q*1024}")
    a.I("s_waitcnt lgkmcnt(0)")
    stamp(a, 14)
    a.I("s_barrier")
    for hd in range(2):
        for q in range(4):
            ad = aPad if q < 2 else aP
            a.I(f"ds_read_b128 {V(KV[hd]+4*q,4)}, v{ad} offset:{(q&1)*2*WSC + hd*4096}")
    for hd in range(2):
        a.I(f"s_waitcnt lgkmcnt({4*(1-hd)})")
        k = KV[hd]
        for i in range(4):
            a.I(f"v_add_f32 v{k+i}, v{k+i}, v{k+4+i}")
            a.I(f"v_add_f32 v{k+8+i}, v{k+8+i}, v{k+12+i}")
        for i in range(4):
            a.I(f"v_add_f32 v{k+i}, v{k+i}, v{k+8+i}")
        a.I(f"buffer_store_dwordx4 {V(k,4)}, v{vO}, {S(dO0,4)}, s{sO[hd]} offen{STF}")
    a.I("s_barrier")


def spread(main, extra):
    if not extra:
        return list(main)
    out = []
    k = 0
    for i, m in enumerate(main):
        out.append(m)
        upto = len(extra) * (i + 1) // len(main)
        out += extra[k:upto]
        k = upto
    return out


NH, NO = 22, 8


def p2_common_setup(a, cls):
    a.I(f"v_lshlrev_b32 v{vO}, 4, v0")
    a.I(f"s_lshl_b32 s{sGr}, s{sROWQ}, 1")
    a.I(f"s_add_u32 s{sGr}, s{sGr}, s{sCOLH}")
    srd(a, dDbg, pDBG, pDBG + 1, 256)
    srd(a, dFL, pWS, pWS + 1, 32 * 256, add=FLB)
    if cls == 0:
        a.I(f"s_and_b32 s{sRB2}, s{sJ}, 3")
        a.I(f"s_lshr_b32 s{sCB}, s{sJ}, 2")
        a.I(f"s_mul_i32 s{sA}, s{sCB}, {OPT['rotc']}")
        a.I(f"s_mul_i32 s{sT}, s{sRB2}, {OPT['rotr']}")
        a.I(f"s_add_u32 s{sA}, s{sA}, s{sT}")
        for _ in range(1 + (7 * OPT['rotc'] + 3 * OPT['rotr']) // 44):
            a.I(f"s_sub_u32 s{sT}, s{sA}, 22")
            a.I(f"s_cmp_ge_u32 s{sA}, 22")
            a.I(f"s_cselect_b32 s{sA}, s{sT}, s{sA}")
        a.I(f"s_lshl_b32 s{sA}, s{sA}, 12")
        a.I(f"s_lshl_b32 s{sB}, s{sA}, 4")
        a.I(f"s_lshl_b32 s{sT}, s{sGr}, 2")
        a.I(f"s_add_u32 s{sRB2}, s{sRB2}, s{sT}")
        for i, (b, n) in enumerate(RGN):
            a.I(f"s_mul_i32 s{sMR[i]}, s{sWV}, {n*2048}")
            a.I(f"s_add_u32 s{sMR[i]}, s{sMR[i]}, {b}")
        a.I(f"s_lshl_b32 s{sT}, s{sRB2}, 16")
        a.I(f"s_add_u32 s{sT}, s{sT}, {OB}")
        srd(a, dOf0, pWS, pWS + 1, 32 * 1024, add=f"s{sT}")
        a.I(f"s_add_u32 s{sT}, s{sT}, {32*1024}")
        srd(a, dOf1, pWS, pWS + 1, 32 * 1024, add=f"s{sT}")
    else:
        srd(a, dOf0, pWS, pWS + 1, 64 * 32 * 1024, add=OB)
        a.I(f"s_lshl_b32 s{sT}, s{sGr}, 3")
        a.I(f"s_lshl_b32 s{sT2}, s{sWV}, 1")
        a.I(f"s_add_u32 s{sT}, s{sT}, s{sT2}")
        a.I(f"s_sub_u32 s{sT}, s{sT}, 8")
        a.I(f"s_lshl_b32 s{sT}, s{sT}, 5")
        a.I(f"s_add_u32 s{sT}, s{sT}, s{sJ}")
        a.I(f"s_lshl_b32 s{sQ0}, s{sT}, 10")
        a.I(f"s_add_u32 s{sQ1}, s{sQ0}, 32768")


def w2_prefetch(a, vt, junk, vTID):
    srd(a, dW2, pW2, pW2 + 1, 1376 * 1024)
    srd(a, dWOd, pWO, pWO + 1, 512 * 1024)


def w2_l2_prefetch(a, vt, junk):
    srd(a, dOf1, pW2, pW2 + 1, 1376 * 1024)
    a.I(f"s_and_b32 s{sT}, s{sJ}, 3")
    a.I(f"s_lshl_b32 s{sT2}, s{sWV}, 2")
    a.I(f"s_add_u32 s{sT}, s{sT}, s{sT2}")
    a.I(f"s_add_u32 s{sT}, s{sT}, {DB - 16}")
    a.I(f"s_lshr_b32 s{sT3}, s{sJ}, 2")
    a.I(f"v_lshlrev_b32 v{vt}, 10, v0")
    a.I(f"s_lshl_b32 s{sT2}, s{sT3}, 7")
    a.I(f"v_add_u32 v{vt}, s{sT2}, v{vt}")
    a.I(f"s_mul_i32 s{sT3}, s{sT3}, {OPT['rotc']}")
    a.I(f"s_add_u32 s{sT3}, s{sT3}, s{sT}")
    for _ in range(2):
        a.I(f"s_sub_u32 s{sT2}, s{sT3}, 22")
        a.I(f"s_cmp_ge_u32 s{sT3}, 22")
        a.I(f"s_cselect_b32 s{sT3}, s{sT2}, s{sT3}")
    a.I(f"s_sub_u32 s{sT2}, s{sT}, 22")
    a.I(f"s_cmp_ge_u32 s{sT}, 22")
    a.I(f"s_cselect_b32 s{sT3}, s{sT2}, s{sT3}")
    a.I(f"s_cselect_b32 s{dOf1}, s{pWO}, s{dOf1}")
    a.I(f"s_cselect_b32 s{dOf1+1}, s{pWO+1}, s{dOf1+1}")
    a.I(f"s_cselect_b32 s{dOf1+2}, {512*1024}, s{dOf1+2}")
    a.I(f"s_and_b32 s{dOf1+1}, s{dOf1+1}, 0xffff")
    a.I(f"s_lshl_b32 s{sT3}, s{sT3}, 16")
    a.I(f"buffer_load_dword v{junk}, v{vt}, {S(dOf1,4)}, s{sT3} offen")


dKV, dQ, dPH = 24, 28, 32


def p2_late_setup(a, cls, t):
    if cls == 0:
        a.I(f"s_mul_i32 s{sT}, s{sRB2}, {2*86*1024}")
        srd(a, dH0, pWS, pWS + 1, 86 * 1024, add=f"s{sT}")
        a.I(f"s_add_u32 s{sT}, s{sT}, {86*1024}")
        srd(a, dH1, pWS, pWS + 1, 86 * 1024, add=f"s{sT}")
        a.I(f"v_lshrrev_b32 v{t[0]}, 3, v0")
        a.I(f"v_and_b32 v{t[1]}, 7, v0")
        a.I(f"v_and_b32 v{t[2]}, 2, v{t[0]}")
        a.I(f"v_lshlrev_b32 v{t[2]}, 1, v{t[2]}")
        a.I(f"v_xor_b32 v{t[2]}, v{t[2]}, v{t[1]}")
        a.I(f"v_lshlrev_b32 v{t[2]}, 4, v{t[2]}")
        a.I(f"v_lshl_add_u32 v{vDX}, v{t[0]}, 10, v{t[2]}")
        a.I(f"s_lshl_b32 s{sT}, s{sWV}, 14")
        a.I(f"s_lshl_b32 s{sT2}, s{sCB}, 7")
        a.I(f"s_add_u32 s{sT}, s{sT}, s{sT2}")
        a.I(f"v_add_u32 v{vDX}, s{sT}, v{vDX}")
        a.I(f"v_add_u32 v{vDW}, 8192, v{vDX}")
    else:
        srd(a, dKV, pWS, pWS + 1, 8 * 32 * 4096, add=KVB)
        srd(a, dQ, pWS, pWS + 1, 64 * 32 * 1024, add=QB)
        srd(a, dPH, pWPHI, pWPHI + 1, 32 * 512)


def issueB_parts(a, step):
    rg, so = slot_rgn(step % DB)
    d = dW2 if step < NH else dWOd

    def f0():
        if step >= NH:
            a.I(f"s_mov_b32 s{sB}, {(step-NH)*65536}")
        a.I(f"s_add_u32 m0, s{sMR[rg]}, {so}")
        a.I(f"buffer_load_dwordx4 v{vDX}, {S(d,4)}, s{sB} offen lds")

    def f1():
        a.I(f"s_add_u32 m0, s{sMR[rg]}, {so+1024}")
        a.I(f"buffer_load_dwordx4 v{vDW}, {S(d,4)}, s{sB} offen lds")
        if step < NH - 1:
            a.I(f"s_add_u32 s{sB}, s{sB}, 65536")
            a.I(f"s_cmp_eq_u32 s{sB}, {NH*65536}")
            a.I(f"s_cselect_b32 s{sB}, 0, s{sB}")
    return [f0, f1]


def p2_gemm(a, early):
    P = f"p2_gemm{early}"
    DA = OPT["da"]
    OAT = OPT["oat"]
    RP = 272
    vL, vTID = 0, 1
    r = Regs(5, VLIM, "v")
    vA = r.alloc(); aB = [[r.alloc(), r.alloc()] for _ in RGN]
    t = [r.alloc() for _ in range(8)]
    acc = [r.alloc(16, 4) for _ in range(4)]
    fa = [r.alloc(8, 4) for _ in range(DA)]
    fb = [[r.alloc(4, 4) for _ in range(2)] for _ in range(2)]
    xr = [r.alloc(4, 4) for _ in range(2)]
    a.L(P)
    stamp(a, 6)
    a.I(f"s_lshl_b32 s{sT}, s{sWV}, 10")
    a.I(f"v_min_u32 v{t[6]}, 39, v{vL}")
    a.I(f"v_lshlrev_b32 v{t[6]}, 2, v{t[6]}")
    a.I(f"s_lshl_b32 s{sT2}, s{sRB2}, 8")
    a.I(f"s_mov_b32 s{sCNT}, 0")
    probe = [f"buffer_load_dword v{t[4]}, v{t[6]}, {S(dFL,4)}, s{sT2} offen sc1"]
    PRE = max(OPT["pre"], early)
    a.I(f"s_lshl_b32 s{sT3}, s{sWV}, 14")
    a.I(f"s_add_u32 s{sT2}, s{sT2}, s{sT3}")
    emit(a, probe)
    for tb in range(early, PRE):
        emit(a, issueB_parts(a, tb))
    a.I(f"v_add_u32 v{vA}, s{sT}, v{vO}")
    a.I(f"v_lshrrev_b32 v{t[0]}, 5, v{vL}")
    a.I(f"v_bfe_u32 v{t[1]}, v{vL}, 2, 2")
    a.I(f"v_lshl_add_u32 v{t[0]}, v{t[0]}, 2, v{t[1]}")
    a.I(f"v_lshlrev_b32 v{t[0]}, 7, v{t[0]}")
    a.I(f"v_and_b32 v{t[2]}, 3, v{vL}")
    a.I(f"v_lshl_add_u32 v{t[0]}, v{t[2]}, 3, v{t[0]}")
    a.I(f"v_bfe_u32 v{t[2]}, v{vL}, 4, 1")
    a.I(f"v_and_b32 v{t[1]}, 2, v{t[1]}")
    a.I(f"v_or_b32 v{t[2]}, v{t[2]}, v{t[1]}")
    a.I(f"v_lshl_add_u32 v{t[1]}, v{t[2]}, 5, v{t[0]}")
    a.I(f"v_xor_b32 v{t[2]}, 2, v{t[2]}")
    a.I(f"v_lshl_add_u32 v{t[2]}, v{t[2]}, 5, v{t[0]}")
    for i in range(len(RGN)):
        a.I(f"v_add_u32 v{aB[i][0]}, s{sMR[i]}, v{t[1]}")
        a.I(f"v_add_u32 v{aB[i][1]}, s{sMR[i]}, v{t[2]}")
    a.I(f"v_mov_b32 v{t[7]}, {L_CNT}")
    a.I(f"s_cmp_lg_u32 s{sWV}, 0")
    a.I(f"s_cbranch_scc1 {P}_lw")
    a.I(f"s_waitcnt vmcnt({2*(PRE-early)})")
    a.L(f"{P}_pr")
    a.I(f"v_cmp_ne_u32 vcc, 1, v{t[4]}")
    a.I(f"s_cbranch_vccz {P}_set")
    a.I(f"s_add_u32 s{sCNT}, s{sCNT}, 1")
    a.I(f"s_cmp_gt_u32 s{sCNT}, 0x8000")
    a.I(f"s_cbranch_scc1 {P}_set")
    a.I(f"s_sleep {OPT['slp']}")
    emit(a, probe)
    a.I("s_waitcnt vmcnt(0)")
    a.I(f"s_branch {P}_pr")
    a.L(f"{P}_set")
    a.I(f"v_mov_b32 v{t[4]}, 1")
    a.I(f"ds_write_b32 v{t[7]}, v{t[4]} offset:4")
    a.I(f"s_branch {P}_go")
    a.L(f"{P}_lw")
    a.I(f"ds_read_b32 v{t[4]}, v{t[7]} offset:4")
    a.I("s_waitcnt lgkmcnt(0)")
    a.I(f"v_cmp_ne_u32 vcc, 1, v{t[4]}")
    a.I(f"s_cbranch_vccz {P}_go")
    a.I(f"s_add_u32 s{sCNT}, s{sCNT}, 1")
    a.I(f"s_cmp_gt_u32 s{sCNT}, 0x100000")
    a.I(f"s_cbranch_scc1 {P}_go")
    a.I("s_sleep 1")
    a.I(f"s_branch {P}_lw")
    a.L(f"{P}_go")
    stamp(a, 7)
    vm = [("B", tb) for tb in range(PRE) for _ in range(2)]

    def loadsA(step, so):
        s = step % DA
        d0, d1 = (dH0, dH1) if step < NH else (dOf0, dOf1)
        return [f"buffer_load_dwordx4 {V(fa[s],4)}, v{vA}, {S(d0,4)}, s{so} offen sc1",
                f"buffer_load_dwordx4 {V(fa[s]+4,4)}, v{vA}, {S(d1,4)}, s{so} offen sc1"]

    def issueA(step):
        if step < NH:
            emit(a, loadsA(step, sA))
            a.I(f"s_add_u32 s{sA}, s{sA}, 4096")
            a.I(f"s_cmp_eq_u32 s{sA}, {NH*4096}")
            a.I(f"s_cselect_b32 s{sA}, 0, s{sA}")
        else:
            a.I(f"s_mov_b32 s{sAo}, {(step-NH)*4096}")
            emit(a, loadsA(step, sAo))
        vm.extend([("A", step)] * 2)

    def issueB(step):
        emit(a, issueB_parts(a, step))
        vm.extend([("B", step)] * 2)

    def wait_for(tags):
        hit = [i for i, tg in enumerate(vm) if tg in tags]
        if not hit:
            return
        idx = max(hit)
        a.I(f"s_waitcnt vmcnt({min(63, len(vm) - 1 - idx)})")
        del vm[:idx + 1]

    def readsB(step):
        rg, so = slot_rgn(step % DB)
        f = fb[step & 1]
        for ct in range(2):
            a.I(f"ds_read_b64_tr_b16 {V(f[ct],2)}, v{aB[rg][ct]} offset:{so}")
            a.I(f"ds_read_b64_tr_b16 {V(f[ct]+2,2)}, v{aB[rg][ct]} offset:{so+1024}")

    a.I(f"s_mov_b32 s{sG}, s{sA}")
    NS = NH + NO
    nextA = 0; nextB = PRE
    while nextA < DA or nextB < min(DB, DA + 2):
        if nextB < min(DB, DA + 2) and nextB <= nextA + 1 or nextA >= DA:
            issueB(nextB); nextB += 1
        else:
            issueA(nextA); nextA += 1
    retries = []
    wait_for({("B", 0)})
    readsB(0)
    for st in range(NS):
        if st == OAT:
            stamp(a, 8)
            while nextA < NS and nextA < st + DA:
                issueA(nextA); nextA += 1
        if st + 1 < NS:
            wait_for({("B", st + 1), ("A", st)})
            a.I("s_waitcnt lgkmcnt(0)")
            readsB(st + 1)
        else:
            wait_for({("A", st)})
            a.I("s_waitcnt lgkmcnt(0)")
        s = st % DA
        f = fb[st & 1]
        if st == NH:
            stamp(a, 9)
        if st >= NH:
            chk = sentinel_check(fa[s], t[4], t[5]) + [f"v_cmp_eq_u32 vcc, -1, v{t[4]}"]
            emit(a, chk)
            a.I(f"s_cbranch_vccnz {P}_retry{st}")
            a.L(f"{P}_back{st}")
            retries.append((st, chk))
        for rt in range(2):
            for ct in range(2):
                c_ = acc[2 * rt + ct]
                cc = "0" if st == 0 else V(c_, 16)
                a.I(f"{MFMA} {V(c_,16)}, {V(f[ct],4)}, {V(fa[s]+4*rt,4)}, {cc}")
        if nextA < NS and (nextA < NH or st >= OAT) and nextA <= st + DA:
            issueA(nextA); nextA += 1
        for _ in range(2):
            if nextB < NS and nextB <= st + DB:
                issueB(nextB); nextB += 1
        if st == NS - 10:
            a.I(f"s_lshl_b32 s{sT}, s{sRB2}, 16")
            srd(a, dXr, pX, pX + 1, 65536, add=f"s{sT}")
            srd(a, dOut, pOUT, pOUT + 1, 65536, add=f"s{sT}")
            a.I(f"v_lshrrev_b32 v{t[0]}, 3, v{vTID}")
            a.I(f"v_and_b32 v{t[1]}, 7, v{vTID}")
            a.I(f"v_lshlrev_b32 v{t[2]}, 10, v{t[0]}")
            a.I(f"v_lshl_add_u32 v{t[2]}, v{t[1]}, 4, v{t[2]}")
            a.I(f"s_lshl_b32 s{sT}, s{sCB}, 7")
            a.I(f"v_add_u32 v{t[2]}, s{sT}, v{t[2]}")
            a.I(f"v_add_u32 v{t[3]}, 32768, v{t[2]}")
            a.I(f"buffer_load_dwordx4 {V(xr[0],4)}, v{t[2]}, {S(dXr,4)}, 0 offen")
            a.I(f"buffer_load_dwordx4 {V(xr[1],4)}, v{t[3]}, {S(dXr,4)}, 0 offen")
            vm.extend([("X", 0)] * 2)
    assert nextA == NS and nextB == NS
    stamp(a, 10)
    assert all(32 * RP <= RGN[1 + rt][1] * 2048 for rt in range(2))
    w0, w1, r0 = aB[0][0], aB[0][1], aB[1][0]
    a.I(f"v_and_b32 v{w0}, 31, v{vL}")
    a.I(f"v_mul_u32_u24 v{w0}, {RP}, v{w0}")
    a.I(f"v_lshrrev_b32 v{w1}, 5, v{vL}")
    a.I(f"v_lshl_add_u32 v{w0}, v{w1}, 4, v{w0}")
    a.I(f"v_add_u32 v{w1}, s{sMR[2]}, v{w0}")
    a.I(f"v_add_u32 v{w0}, s{sMR[1]}, v{w0}")
    a.I(f"v_mul_u32_u24 v{r0}, {RP}, v{t[0]}")
    a.I(f"v_lshl_add_u32 v{r0}, v{t[1]}, 5, v{r0}")
    a.I(f"v_add_u32 v{vA}, {RGN[2][0]}, v{r0}")
    for rt in range(2):
        for ct in range(2):
            for q in range(4):
                a.I(f"ds_write_b128 v{w0 if rt == 0 else w1}, {V(acc[2*rt+ct]+4*q,4)} offset:{ct*128 + q*32}")
    a.I("s_waitcnt lgkmcnt(0)")
    a.I("s_barrier")
    Rr = acc[0]
    assert RGN[1][0] == 0
    for hf in range(2):
        for w in range(4):
            for p in range(2):
                a.I(f"ds_read_b128 {V(Rr + hf*32 + w*8 + p*4, 4)}, v{r0 if hf == 0 else vA} offset:{w*RGN[1+hf][1]*2048 + p*16}")
    a.I("s_waitcnt vmcnt(0)")
    for hf in range(2):
        a.I(f"s_waitcnt lgkmcnt({8*(1-hf)})")
        b = Rr + hf * 32
        for i in range(8):
            a.I(f"v_add_f32 v{b+i}, v{b+i}, v{b+8+i}")
            a.I(f"v_add_f32 v{b+16+i}, v{b+16+i}, v{b+24+i}")
        for i in range(4):
            a.I(f"v_lshlrev_b32 v{b+8+2*i}, 16, v{xr[hf]+i}")
            a.I(f"v_and_b32 v{b+8+2*i+1}, 0xffff0000, v{xr[hf]+i}")
        for i in range(8):
            a.I(f"v_add_f32 v{b+i}, v{b+i}, v{b+16+i}")
        for i in range(8):
            a.I(f"v_add_f32 v{b+i}, v{b+i}, v{b+8+i}")
        pack8(a, b + 16, b)
        a.I(f"buffer_store_dwordx4 {V(b+16,4)}, v{t[2+hf]}, {S(dOut,4)}, 0 offen")
    stamp_out(a)
    if OPT["dbgclk"]:
        a.I("s_waitcnt vmcnt(0)")
        for i, ins in enumerate(("s_memtime", "s_memrealtime")):
            a.I(f"{ins} s[100:101]")
            a.I("s_waitcnt lgkmcnt(0)")
            a.I(f"v_writelane_b32 v{vST}, s100, {2+i}")
        a.I(f"s_lshl_b32 s{sT}, s2, 4")
        a.I(f"s_lshl_b32 s{sT2}, s{sWV}, 12")
        a.I(f"s_add_u32 s{sT}, s{sT}, s{sT2}")
        a.I(f"s_add_u32 s{sT}, s{sT}, 16")
        a.I("v_lshlrev_b32 v254, 2, v0")
        a.I("s_mov_b64 exec, 0xf")
        a.I(f"buffer_store_dword v{vST}, v254, {S(dDbg,4)}, s{sT} offen")
    a.I("s_endpgm")
    for (st, chk) in retries:
        a.L(f"{P}_retry{st}")
        a.I(f"s_mov_b32 s{sCNT}, 0")
        if st < NH:
            a.I(f"s_add_u32 s{sT2}, s{sG}, {st*4096}")
            a.I(f"s_sub_u32 s{sT3}, s{sT2}, {NH*4096}")
            a.I(f"s_cmp_ge_u32 s{sT2}, {NH*4096}")
            a.I(f"s_cselect_b32 s{sT2}, s{sT3}, s{sT2}")
        else:
            a.I(f"s_mov_b32 s{sT2}, {(st-NH)*4096}")
        a.L(f"{P}_rl{st}")
        a.I("s_sleep 2")
        emit(a, loadsA(st, sT2))
        a.I("s_waitcnt vmcnt(0)")
        emit(a, chk)
        a.I(f"s_add_u32 s{sCNT}, s{sCNT}, 1")
        a.I(f"s_cmp_gt_u32 s{sCNT}, 0x8000")
        a.I(f"s_cbranch_scc1 {P}_back{st}")
        a.I(f"s_cbranch_vccnz {P}_rl{st}")
        a.I(f"s_branch {P}_back{st}")


def p2_prod(a):
    vL = 0
    a.L("p2_prod")
    stamp(a, 6)
    a.I("s_setprio 3")
    r = Regs(5, VLIM, "v")
    t = [r.alloc() for _ in range(8)]
    vK = r.alloc(); aP = r.alloc(); sgn = r.alloc(); aKW = r.alloc(); aKR = r.alloc()
    KP = [r.alloc(16, 4) for _ in range(4)]
    QF = r.alloc(8, 4)
    WP = r.alloc(4, 4)
    D = [r.alloc(16, 4) for _ in range(2)]
    O = [r.alloc(16, 4) for _ in range(2)]
    T4 = [r.alloc(4) for _ in range(2)]
    sPW, sK0, sK1 = sRH, sCQ, sROT
    a.I(f"s_sub_u32 s{sPW}, s{sWV}, 4")
    a.I(f"s_lshl_b32 s{sM}, s{sPW}, 10")
    a.I(f"s_add_u32 s{sM}, s{sM}, {L_PH}")
    a.I(f"s_lshl_b32 s{sT}, s{sJ}, 9")
    a.I(f"s_mov_b32 m0, s{sM}")
    qloads = [f"buffer_load_dwordx4 {V(QF,4)}, v{vO}, {S(dQ,4)}, s{sQ0} offen sc1",
              f"buffer_load_dwordx4 {V(QF+4,4)}, v{vO}, {S(dQ,4)}, s{sQ1} offen sc1"]
    a.I(f"buffer_load_dwordx4 v{vO}, {S(dPH,4)}, s{sT} offen lds")
    a.I(f"s_lshl_b32 s{sT2}, s{sGr}, 2")
    a.I(f"s_add_u32 s{sT2}, s{sT2}, s{sPW}")
    a.I(f"s_lshl_b32 s{sT2}, s{sT2}, 8")
    a.I(f"s_lshr_b32 s{sT}, s{sJ}, 4")
    a.I(f"s_lshl_b32 s{sT}, s{sT}, 4")
    a.I(f"s_add_u32 s{sT2}, s{sT2}, s{sT}")
    a.I(f"v_and_b32 v{t[7]}, 3, v{vL}")
    a.I(f"v_lshlrev_b32 v{t[7]}, 2, v{t[7]}")
    qprobe = f"buffer_load_dword v{t[6]}, v{t[7]}, {S(dFL,4)}, s{sT2} offen offset:192 sc1"
    a.I(qprobe)
    a.I(f"v_and_b32 v{t[0]}, 31, v{vL}")
    a.I(f"v_min_u32 v{t[0]}, 16, v{t[0]}")
    a.I(f"v_and_b32 v{t[1]}, 32, v{vL}")
    a.I(f"v_add_u32 v{t[0]}, v{t[0]}, v{t[1]}")
    a.I(f"v_lshlrev_b32 v{vK}, 4, v{t[0]}")
    a.I(f"s_lshl_b32 s{sK0}, s{sJ}, 12")
    a.I(f"s_lshl_b32 s{sK1}, s{sPW}, 10")
    a.I(f"s_add_u32 s{sK0}, s{sK0}, s{sK1}")
    kloads = []
    for p in range(8):
        kloads.append(f"s_add_u32 s{sK1}, s{sK0}, {p*32*4096}")
        kloads.append(f"buffer_load_dwordx4 {V(KP[0]+4*p,4)}, v{vK}, {S(dKV,4)}, s{sK1} offen sc1")
    a.I(f"v_mov_b32 v{t[2]}, {L_CNT}")
    a.I(f"v_mov_b32 v{t[3]}, 1")
    a.I(f"v_lshrrev_b32 v{t[4]}, 5, v{vL}")
    a.I(f"v_bfe_u32 v{t[5]}, v{vL}, 2, 2")
    a.I(f"v_lshl_add_u32 v{aP}, v{t[4]}, 2, v{t[5]}")
    a.I(f"v_lshlrev_b32 v{aP}, 5, v{aP}")
    a.I(f"v_and_b32 v{t[5]}, 3, v{vL}")
    a.I(f"v_lshl_add_u32 v{aP}, v{t[5]}, 3, v{aP}")
    a.I(f"v_add_u32 v{aP}, s{sM}, v{aP}")
    a.I(f"v_bfe_u32 v{t[5]}, v{vL}, 4, 1")
    a.I(f"v_mul_u32_u24 v{sgn}, 0x8000, v{t[5]}")
    a.I(f"v_lshl_or_b32 v{sgn}, v{sgn}, 16, v{sgn}")
    a.I(f"s_lshl_b32 s{sT}, s{sPW}, 9")
    a.I(f"v_lshlrev_b32 v{aKR}, 3, v{vL}")
    a.I(f"v_add_u32 v{aKR}, {L_KV}, v{aKR}")
    a.I(f"v_add_u32 v{aKW}, s{sT}, v{aKR}")

    def until_ready(name, loads, groups):
        a.I(f"s_mov_b32 s{sCNT}, 0")
        a.L(f"{name}_chk")
        a.I("s_waitcnt vmcnt(0)")
        for n, g in enumerate(groups):
            emit(a, sentinel_check(g, t[6] if n else t[4], t[5]))
            if n:
                a.I(f"v_max_u32 v{t[4]}, v{t[4]}, v{t[6]}")
        a.I(f"v_cmp_eq_u32 vcc, -1, v{t[4]}")
        a.I(f"s_cbranch_vccz {name}_ok")
        a.I(f"s_add_u32 s{sCNT}, s{sCNT}, 1")
        a.I(f"s_cmp_gt_u32 s{sCNT}, 0x8000")
        a.I(f"s_cbranch_scc1 {name}_ok")
        a.I("s_sleep 6")
        emit(a, loads)
        a.I(f"s_branch {name}_chk")
        a.L(f"{name}_ok")
    a.I(f"s_mov_b32 s{sCNT}, 0")
    a.L("p2q_chk")
    a.I("s_waitcnt vmcnt(0)")
    a.I(f"v_cmp_ne_u32 vcc, 1, v{t[6]}")
    a.I("s_cbranch_vccz p2q_ok")
    a.I(f"s_add_u32 s{sCNT}, s{sCNT}, 1")
    a.I(f"s_cmp_gt_u32 s{sCNT}, 0x8000")
    a.I("s_cbranch_scc1 p2q_ok")
    a.I("s_sleep 4")
    a.I(qprobe)
    a.I("s_branch p2q_chk")
    a.L("p2q_ok")
    emit(a, qloads)
    a.I("s_waitcnt vmcnt(0)")
    stamp(a, 7)
    a.I(f"ds_read_b64_tr_b16 {V(WP,2)}, v{aP}")
    a.I(f"ds_read_b64_tr_b16 {V(WP+2,2)}, v{aP} offset:256")
    a.I("s_waitcnt lgkmcnt(0)")
    for i in range(4):
        a.I(f"v_xor_b32 v{WP+i}, v{WP+i}, v{sgn}")
    for rt in range(2):
        a.I(f"{MFMA} {V(D[rt],16)}, {V(WP,4)}, {V(QF+4*rt,4)}, 0")
    sm = zipl(*[softmax_pm(D[rt], T4[rt], f"s{sL2E}") + pack8l(D[rt], D[rt]) + pack8l(D[rt] + 4, D[rt] + 8) for rt in range(2)])
    a.I(f"v_and_b32 v{t[7]}, 7, v{vL}")
    a.I(f"v_lshlrev_b32 v{t[7]}, 17, v{t[7]}")
    kprobe = f"buffer_load_dword v{t[6]}, v{t[7]}, {S(dKV,4)}, s{sK0} offen sc1"
    emit(a, sm[:len(sm) * 2 // 3])
    a.I(kprobe)
    emit(a, sm[len(sm) * 2 // 3:])
    stamp(a, 8)
    a.I(f"s_mov_b32 s{sCNT}, 0")
    a.L("p2kp_chk")
    a.I("s_waitcnt vmcnt(0)")
    a.I(f"v_cmp_eq_u32 vcc, -1, v{t[6]}")
    a.I("s_cbranch_vccz p2kp_ok")
    a.I(f"s_add_u32 s{sCNT}, s{sCNT}, 1")
    a.I(f"s_cmp_gt_u32 s{sCNT}, 0x8000")
    a.I("s_cbranch_scc1 p2kp_ok")
    a.I(f"s_sleep {OPT['slpk']}")
    a.I(kprobe)
    a.I("s_branch p2kp_chk")
    a.L("p2kp_ok")
    emit(a, kloads)
    until_ready("p2k", kloads, [KP[0], KP[0] + 8, KP[1], KP[1] + 8])
    stamp(a, 9)
    K0 = KP[0]
    for step in (16, 8, 4):
        for i in range(step):
            a.I(f"v_add_f32 v{K0+i}, v{K0+i}, v{K0+step+i}")
    a.I(f"v_cvt_pk_bf16_f32 v{K0+4}, v{K0}, v{K0+1}")
    a.I(f"v_cvt_pk_bf16_f32 v{K0+5}, v{K0+2}, v{K0+3}")
    a.I(f"ds_write_b64 v{aKW}, {V(K0+4,2)}")
    a.I("s_waitcnt lgkmcnt(0)")
    a.I("s_mov_b64 exec, 1")
    a.I(f"ds_add_u32 v{t[2]}, v{t[3]}")
    a.I("s_mov_b64 exec, -1")
    a.I(f"s_mov_b32 s{sCNT}, 0")
    a.L("p2_pc")
    a.I(f"ds_read_b32 v{t[4]}, v{t[2]}")
    a.I("s_waitcnt lgkmcnt(0)")
    a.I(f"v_readfirstlane_b32 s{sT}, v{t[4]}")
    a.I(f"s_add_u32 s{sCNT}, s{sCNT}, 1")
    a.I(f"s_cmp_gt_u32 s{sCNT}, 0x100000")
    a.I("s_cbranch_scc1 p2_pc_done")
    a.I(f"s_cmp_lt_u32 s{sT}, 4")
    a.I("s_cbranch_scc1 p2_pc")
    a.L("p2_pc_done")
    for q in range(4):
        a.I(f"ds_read_b64 {V(KP[1]+2*q,2)}, v{aKR} offset:{q*512}")
    a.I("s_waitcnt lgkmcnt(0)")
    for rt in range(2):
        a.I(f"{MFMA} {V(O[rt],16)}, {V(KP[1],4)}, {V(D[rt],4)}, 0")
    for rt in range(2):
        a.I(f"{MFMA} {V(O[rt],16)}, {V(KP[1]+4,4)}, {V(D[rt]+4,4)}, {V(O[rt],16)}")
    for rt in range(2):
        o = O[rt]
        a.I(f"v_add_f32 v{o+8}, 0x358637bd, v{o+8}")
        a.I(f"v_rcp_f32 v{o+8}, v{o+8}")
        for i in range(8):
            a.I(f"v_mul_f32 v{o+i}, v{o+i}, v{o+8}")
        pack8(a, o + 12, o)
        a.I(f"buffer_store_dwordx4 {V(o+12,4)}, v{vO}, {S(dOf0,4)}, s{sQ0 if rt == 0 else sQ1} offen sc1")
    stamp(a, 10)
    stamp_out(a)
    a.I("s_endpgm")


def gen():
    a = Asm()
    a.I("s_cmp_ge_u32 s2, 256")
    a.I("s_cbranch_scc1 k_end")
    if OPT["stamp"]:
        a.I(f"v_mov_b32 v{vST}, 0")
    stamp(a, 0)
    if OPT["dbgclk"]:
        a.I(f"v_mov_b32 v{vST}, 0")
        for i, ins in enumerate(("s_memtime", "s_memrealtime")):
            a.I(f"{ins} s[100:101]")
            a.I("s_waitcnt lgkmcnt(0)")
            a.I(f"v_writelane_b32 v{vST}, s100, {i}")
    a.I("s_load_dwordx4 s[4:7], s[0:1], 0")
    a.I("s_load_dwordx4 s[12:15], s[0:1], 40")
    a.I("s_load_dwordx4 s[8:11], s[0:1], 16")
    a.I("s_load_dwordx4 s[16:19], s[0:1], 56")
    a.I("s_load_dwordx4 s[20:23], s[0:1], 72")
    a.I("v_mov_b32 v1, v0")
    a.I("v_lshrrev_b32 v2, 6, v0")
    a.I("v_and_b32 v0, 63, v0")
    a.I(f"v_readfirstlane_b32 s{sWV}, v2")
    a.I(f"s_lshr_b32 s{sJ}, s2, 3")
    a.I(f"s_and_b32 s{sROWQ}, s2, 3")
    a.I(f"s_bfe_u32 s{sCOLH}, s2, 0x10002")
    a.I(f"s_cmp_lt_u32 s{sJ}, 20")
    a.I("s_cbranch_scc1 k1_ffn")
    a.I(f"s_cmp_lt_u32 s{sJ}, 28")
    a.I("s_cbranch_scc1 k1_kv")
    k1_type(a, "q")
    a.L("k_end")
    a.I("s_endpgm")
    k1_type(a, "kv")
    k1_type(a, "ffn")
    a.L("p2_start")
    p2_prod(a)
    e1 = RGN[0][1] if OPT["e1"] else 0
    for e in sorted({e1, e1 + (RGN[1][1] if OPT["e2"] else 0)}, reverse=True):
        p2_gemm(a, e)
    return a


def main(out):
    ref = open(f"cdna_kernels/{NAME}.s.ref").read().split("\n")
    head = [l for l in ref if l.startswith(";") and "@launch" not in l and "Override" not in l and "grid=ceil" not in l]
    k = gen()
    n = k.fix_hazards("-v" in sys.argv)
    txt = "\n".join(head) + "\n"
    txt += f"; @launch grid=(256,1,1) block=(512,1,1) lds={LDS_TOTAL}\n"
    txt += '.amdgcn_target "amdgcn-amd-amdhsa--gfx950"\n.text\n'
    txt += f".globl {KN}\n.p2align 8\n.type {KN},@function\n{KN}:\n" + k.text()
    txt += ".fill 8192, 4, 0xbf810000\n"
    txt += f""".section .rodata,"a"
.p2align 6
.amdhsa_kernel {KN}
  .amdhsa_next_free_vgpr 256
  .amdhsa_next_free_sgpr 102
  .amdhsa_accum_offset 256
  .amdhsa_group_segment_fixed_size 0
  .amdhsa_kernarg_size 88
  .amdhsa_user_sgpr_count 2
  .amdhsa_user_sgpr_kernarg_segment_ptr 1
  .amdhsa_system_sgpr_workgroup_id_x 1
.end_amdhsa_kernel
"""
    open(out, "w").write(txt)
    print(f"written {out}: hazard pads {n}")


if __name__ == "__main__":
    out = [x for x in sys.argv[1:] if not x.startswith("-")]
    main(out[0] if out else f"cdna_kernels/{NAME}.s")
```
